```python
import torch

def _softmax(x, axis=-1):
    return torch.softmax(x, dim=axis)
def _gelu(x):
    return torch.nn.functional.gelu(x, approximate="tanh")
def _silu(x):
    return torch.nn.functional.silu(x)
def _sigmoid(x):
    return torch.sigmoid(x)
def _layernorm(x, axis=-1, eps=1e-5):
    m = x.mean(dim=axis, keepdim=True)
    v = x.var(dim=axis, keepdim=True, unbiased=False)
    return (x - m) / torch.sqrt(v + eps)
def _scatter_add(tgt, idx, src, axis=0):
    return tgt.clone().index_add_(axis, idx, src)
def _segment_sum(src, seg, n):
    out = torch.zeros((n,) + src.shape[1:], dtype=src.dtype)
    return out.index_add_(0, seg, src)
def _pad(x, pw):
    flat = tuple(v for pair in reversed(pw) for v in pair)
    return torch.nn.functional.pad(x, flat)

kernel_name = 'recurrent_scan__mha_block__swiglu_ffn__prompt'

def setup_inputs():

    _w = (lambda a: (lambda t: t.to(torch.bfloat16) if t.is_floating_point() else t)(torch.as_tensor(a)))
    def _A_setup():
        B, S, D, H = 1, 2048, 448, 16
        return {
            "x": _w((lambda *s: torch.randn(*s, dtype=torch.bfloat16) * 0.05)(B, S, D)),
            "wqkv": _w((lambda *s: torch.randn(*s, dtype=torch.bfloat16) * 0.05)(D, 3 * D)),
            "wo": _w((lambda *s: torch.randn(*s, dtype=torch.bfloat16) * 0.05)(D, D)),
        }
    _A_in = _A_setup()

    def _B_setup():
        B, S, D, F = 1, 2048, 448, 1792
        return {
            "x": _w((lambda *s: torch.randn(*s, dtype=torch.bfloat16) * 0.05)(B, S, D)),
            "w_gate": _w((lambda *s: torch.randn(*s, dtype=torch.bfloat16) * 0.05)(D, F)),
            "w_up": _w((lambda *s: torch.randn(*s, dtype=torch.bfloat16) * 0.05)(D, F)),
            "w_down": _w((lambda *s: torch.randn(*s, dtype=torch.bfloat16) * 0.05)(F, D)),
        }
    _B_in = _B_setup()

    return {
        "A_x": _A_in["x"],
        "A_wqkv": _A_in["wqkv"],
        "A_wo": _A_in["wo"],
        "B_x": _B_in["x"],
        "B_w_gate": _B_in["w_gate"],
        "B_w_up": _B_in["w_up"],
        "B_w_down": _B_in["w_down"],
    }

def reference(A_x, A_wqkv, A_wo, B_x, B_w_gate, B_w_up, B_w_down):
    def _A_ref(x, wqkv, wo):
        B, S, D = x.shape
        H = 16
        Dh = D // H
        qkv = (lambda x, *d: x.permute(*d))((x @ wqkv).reshape(B, S, 3, H, Dh), 2, 0, 3, 1, 4)
        q, k, v = qkv[0], qkv[1], qkv[2]
        scores = torch.einsum("bhqd,bhkd->bhqk", q, k) * (Dh ** -0.5)
        p = _softmax(scores, axis=-1)
        o = torch.einsum("bhqk,bhkd->bhqd", p, v)
        return (lambda x, *d: x.permute(*d))(o, 0, 2, 1, 3).reshape(B, S, D) @ wo

    def _B_ref(x, w_gate, w_up, w_down):
        g = _silu(x @ w_gate)
        u = x @ w_up
        return (g * u) @ w_down

    x = A_x
    xn = _layernorm(x, axis=-1)
    s = _A_ref(xn, A_wqkv, A_wo)
    g = _silu(_B_ref(xn, B_w_gate, B_w_up, B_w_down))
    return x + s * g
```

```python
import re

TRANS = ("v_exp_", "v_log_", "v_rcp_", "v_rsq_", "v_sqrt_", "v_sin_", "v_cos_")
_rng = re.compile(r"^([vas])\[(\d+):(\d+)\]$")
_one = re.compile(r"^([vas])(\d+)$")


def regs_of(op):
    op = op.strip()
    op = op.lstrip("-").strip("|")
    m = _rng.match(op)
    if m:
        return [f"{m.group(1)}{i}" for i in range(int(m.group(2)), int(m.group(3)) + 1)]
    m = _one.match(op)
    if m:
        return [op]
    if op in ("vcc", "vcc_lo", "vcc_hi"):
        return ["vcc"]
    if op in ("exec", "exec_lo", "exec_hi"):
        return ["exec"]
    if op == "m0":
        return ["m0"]
    return []


class Ins:
    def __init__(self, text, tok=None, need=None):
        self.text = text
        self.tok = tok
        self.need = need or []
        self.dst = []
        self.src = []
        self.srcc = []
        self.passes = 0
        self.target = None
        self.uncond = False
        t = text.split(";")[0].strip()
        if t.endswith(":"):
            self.kind = "label"
            self.name = t[:-1]
            return
        if t.startswith(".") or t == "":
            self.kind = "dir"
            return
        if t == "WAIT":
            self.kind = "pwait"
            return
        sp = t.split(None, 1)
        mn = self.mn = sp[0]
        rest = sp[1] if len(sp) > 1 else ""
        ops = [o.strip() for o in rest.split(",")] if rest else []
        mods = ""
        if ops:
            last = ops[-1].split(None, 1)
            ops[-1] = last[0]
            mods = last[1] if len(last) > 1 else ""
        self.ops = ops
        self.mods = mods
        R = [regs_of(o) for o in ops]
        allr = [r for x in R for r in x]
        if mn.startswith("v_mfma"):
            self.kind = "mfma"
            self.dst = R[0]
            self.src = R[1] + R[2]
            self.srcc = R[3]
            self.passes = 8 if "32x32" in mn else 4
        elif mn.startswith("v_"):
            self.kind = "trans" if mn.startswith(TRANS) else ("dot" if mn.startswith("v_dot") else "valu")
            if mn.startswith("v_permlane") and "swap" in mn:
                self.dst = allr
                self.src = allr
            elif mn.startswith("v_cmpx"):
                self.dst = ["exec"] + R[0]
                self.src = [r for x in R[1:] for r in x]
            else:
                self.dst = R[0]
                self.src = [r for x in R[1:] for r in x]
                if mn.startswith(("v_add_co", "v_sub_co", "v_addc_co", "v_subb_co")):
                    self.dst = R[0] + R[1]
                    self.src = [r for x in R[2:] for r in x]
                if mn.startswith(("v_fmac", "v_mac", "v_dot2c", "v_writelane")) or "UNUSED_PRESERVE" in mods:
                    self.src = self.src + R[0]
                if self.kind == "dot":
                    self.srcc = R[0] if mn.startswith("v_dot2c") else R[3]
                    self.srcab = R[1] + R[2]
        elif mn.startswith("ds_"):
            if mn.startswith(("ds_read", "ds_bpermute", "ds_permute", "ds_swizzle")) or "_rtn" in mn:
                self.kind = "dsr"
                self.dst = R[0]
                self.src = [r for x in R[1:] for r in x]
            else:
                self.kind = "dsw"
                self.src = allr
        elif mn.startswith(("buffer_", "global_")):
            words = mods.split()
            if mn in ("buffer_wbl2", "buffer_inv"):
                self.kind = "vst"
            elif "lds" in words or mn.startswith("global_load_lds"):
                self.kind = "dma"
                self.src = allr + ["m0"]
            elif "_load" in mn:
                self.kind = "vld"
                self.dst = R[0]
                self.src = [r for x in R[1:] for r in x]
            elif "atomic" in mn and "sc0" in words:
                self.kind = "vld"
                self.dst = R[0]
                self.src = allr
            else:
                self.kind = "vst"
                self.src = allr
                if mn.endswith(("x3", "x4")):
                    self.wide = R[0] if mn.startswith("buffer_") else R[1]
        elif mn.startswith(("s_load", "s_memtime", "s_memrealtime", "s_buffer_load")):
            self.kind = "smem"
            self.dst = R[0]
            self.src = [r for x in R[1:] for r in x]
        elif mn in ("s_branch",) or mn.startswith("s_cbranch"):
            self.kind = "branch"
            self.target = ops[0]
            self.uncond = mn == "s_branch"
        elif mn == "s_endpgm":
            self.kind = "end"
        elif mn == "s_waitcnt":
            self.kind = "wait"
            self.vm = self.lg = None
            m = re.search(r"vmcnt\((\d+)\)", t)
            if m:
                self.vm = int(m.group(1))
            m = re.search(r"lgkmcnt\((\d+)\)", t)
            if m:
                self.lg = int(m.group(1))
        elif mn == "s_nop":
            self.kind = "nop"
            self.n = int(ops[0]) + 1
        elif mn in ("s_barrier", "s_setprio", "s_sleep"):
            self.kind = "misc"
        elif mn.startswith("s_"):
            self.kind = "salu"
            if mn.startswith("s_cmp") or mn.startswith("s_bitcmp"):
                self.src = allr
            else:
                self.dst = R[0]
                self.src = [r for x in R[1:] for r in x]
                if "saveexec" in mn:
                    self.dst = self.dst + ["exec"]
                    self.src = self.src + ["exec"]
        else:
            raise ValueError("unknown instruction " + text)


CAP = 24


class St:
    def __init__(self):
        self.vm = {}
        self.lg = {}
        self.smem = set()
        self.w = {}
        self.c = {}
        self.ws = {}

    def copy(self):
        s = St()
        s.vm, s.lg, s.smem = dict(self.vm), dict(self.lg), set(self.smem)
        s.w = {k: list(v) for k, v in self.w.items()}
        s.c, s.ws = dict(self.c), dict(self.ws)
        return s

    def key(self):
        return (sorted(self.vm.items()), sorted(self.lg.items()), sorted(self.smem),
                sorted((k, sorted(v)) for k, v in self.w.items()), sorted(self.c.items()), sorted(self.ws.items()))

    def merge(self, o):
        for a, b in ((self.vm, o.vm), (self.lg, o.lg), (self.ws, o.ws)):
            for k, v in b.items():
                a[k] = min(a.get(k, v), v)
        self.smem |= o.smem
        for k, v in o.c.items():
            if k not in self.c or v[0] < self.c[k][0]:
                self.c[k] = v
        for k, v in o.w.items():
            cur = self.w.setdefault(k, [])
            for e in v:
                for i, f in enumerate(cur):
                    if f[0] == e[0] and f[2] == e[2]:
                        cur[i] = (e[0], min(e[1], f[1]), e[2])
                        break
                else:
                    cur.append(e)

    def tick(self, n):
        for k in list(self.w):
            v = [(a, d + n, i) for a, d, i in self.w[k] if d + n < CAP]
            if v:
                self.w[k] = v
            else:
                del self.w[k]
        self.c = {k: (d + n, p) for k, (d, p) in self.c.items() if d + n < CAP}
        self.ws = {k: d + n for k, d in self.ws.items() if d + n < 4}

    def do_wait(self, vm, lg):
        if vm is not None:
            self.vm = {k: a for k, a in self.vm.items() if a < vm}
        if lg is not None:
            self.lg = {k: a for k, a in self.lg.items() if a < lg}
            if lg == 0:
                self.smem = set()


def need_states(s, i):
    need = 0

    def req(r, kinds, n):
        nonlocal need
        for a, d, info in s.w.get(r, []):
            if a in kinds:
                nn = n(info) if callable(n) else n
                need = max(need, nn - d)

    rd12 = lambda info: 12 if info[0] == 8 else 8
    k = i.kind
    VA = ("valu", "trans")
    if k == "mfma":
        for r in i.src:
            req(r, VA, 2); req(r, ("dot",), 3); req(r, ("mfma",), rd12)
        for r in i.srcc:
            req(r, VA, 2); req(r, ("dot",), 3)
            req(r, ("mfma",), lambda info: 0 if (info[0] == i.passes and info[1] == tuple(i.srcc)) else (10 if info[0] == 8 else 6))
        req("exec", VA, 4)
    elif k in ("valu", "trans", "dot"):
        for r in i.src + i.dst:
            req(r, ("mfma",), rd12)
        for r in i.src:
            req(r, ("trans",), 1)
            if r[0] == "s" or r == "vcc" or r == "exec":
                req(r, VA, 2)
            if i.mn.startswith(("v_readlane", "v_readfirstlane")):
                req(r, VA + ("dot",), 1)
            if i.mn.startswith("v_permlane") or "row_" in i.mods or "quad_perm" in i.mods or "dpp" in i.mn:
                req(r, VA + ("dot",), 2)
        if i.mn.startswith(("v_readlane", "v_readfirstlane", "v_writelane", "v_permlane")):
            req("exec", VA, 4)
        if "row_" in i.mods or "quad_perm" in i.mods:
            req("exec", VA, 5)
        for r in set(i.src + i.dst):
            if k == "dot" and r in i.srcc and r not in i.srcab:
                req(r, ("dot",), lambda info: 0 if info == i.mn else 3)
            else:
                req(r, ("dot",), 3)
        for r in i.dst:
            if r in s.c:
                d, p = s.c[r]
                need = max(need, (7 if p == 8 else 3) - d)
            if r in s.ws:
                need = max(need, 2 - s.ws[r])
    elif k in ("dsr", "dsw", "vld", "vst", "dma"):
        for r in i.src + i.dst:
            req(r, ("mfma",), rd12); req(r, ("dot",), 3)
        for r in i.src:
            if r[0] == "s" and k in ("vld", "vst", "dma"):
                req(r, VA, 5)
        if k == "dma":
            req("m0", ("salu",), 1)
        for r in i.dst:
            if r in s.ws:
                need = max(need, 1 - s.ws[r])
    return max(need, 0)


def step(s, i, out):
    k = i.kind
    if k in ("label", "dir"):
        out.append(i.text)
        return
    keys = []
    if k == "pwait":
        keys = list(i.need)
    elif k not in ("wait", "nop", "misc", "branch", "end"):
        keys = list(i.src) + list(i.dst) + list(i.srcc)
    vm = lg = None
    for r in keys:
        if r in s.vm:
            vm = s.vm[r] if vm is None else min(vm, s.vm[r])
        if r in s.lg:
            lg = s.lg[r] if lg is None else min(lg, s.lg[r])
        if r in s.smem:
            lg = 0
    if lg is not None and s.smem:
        lg = 0
    if vm is not None or lg is not None:
        if k in ("vld", "dsr"):
            tbl = s.vm if k == "vld" else s.lg
            vm2 = lg2 = None
            for r in keys:
                samedst = r in i.dst and r not in i.src
                if r in s.vm and not (samedst and k == "vld"):
                    vm2 = s.vm[r] if vm2 is None else min(vm2, s.vm[r])
                if r in s.lg and not (samedst and k == "dsr"):
                    lg2 = s.lg[r] if lg2 is None else min(lg2, s.lg[r])
                if r in s.smem:
                    lg2 = 0
            vm, lg = vm2, lg2
            if lg is not None and s.smem:
                lg = 0
    if vm is not None or lg is not None:
        p = []
        if vm is not None:
            vm = min(vm, 63); p.append(f"vmcnt({vm})")
        if lg is not None:
            lg = min(lg, 15); p.append(f"lgkmcnt({lg})")
        out.append("s_waitcnt " + " ".join(p))
        s.do_wait(vm, lg)
        s.tick(1)
    if k == "pwait":
        return
    n = need_states(s, i)
    while n > 0:
        m = min(n, 16)
        out.append(f"s_nop {m - 1}")
        s.tick(m)
        n -= m
    out.append(i.text)
    if k == "wait":
        s.do_wait(i.vm, i.lg)
    s.tick(i.n if k == "nop" else 1)
    toks = [] if i.tok is None else (list(i.tok) if isinstance(i.tok, (list, tuple)) else [i.tok])
    if k in ("vld", "vst", "dma"):
        s.vm = {a: b + 1 for a, b in s.vm.items()}
        for r in list(i.dst) + toks:
            s.vm[r] = 0
    if k in ("dsr", "dsw"):
        s.lg = {a: b + 1 for a, b in s.lg.items()}
        for r in list(i.dst) + toks:
            s.lg[r] = 0
    if k == "smem":
        s.smem |= set(i.dst)
    for r in i.dst:
        if k == "mfma":
            s.w[r] = [("mfma", 0, (i.passes, tuple(i.dst)))]
        elif k in ("valu", "trans", "salu"):
            s.w[r] = [(k, 0, None)]
        elif k == "dot":
            s.w[r] = [("dot", 0, i.mn)]
        else:
            s.w.pop(r, None)
    if k == "mfma":
        for r in i.srcc:
            s.c[r] = (0, i.passes)
    if hasattr(i, "wide"):
        for r in i.wide:
            s.ws[r] = 0


class Prog:
    def __init__(self):
        self.it = []

    def __call__(self, text, tok=None):
        if isinstance(text, Ins):
            self.it.append(text)
        elif isinstance(text, (list, tuple)):
            for t in text:
                self(t)
        else:
            for line in text.strip().split("\n"):
                line = line.strip()
                if line and not line.startswith(";"):
                    self.it.append(Ins(line, tok=tok))

    def wait(self, need):
        self.it.append(W(need))

    def finalize(self):
        it = self.it
        blocks, cur = [], []
        for i in it:
            if i.kind == "label" and cur:
                blocks.append(cur); cur = []
            cur.append(i)
            if i.kind in ("branch", "end"):
                blocks.append(cur); cur = []
        if cur:
            blocks.append(cur)
        lab = {}
        for n, b in enumerate(blocks):
            for i in b:
                if i.kind == "label":
                    lab[i.name] = n
        succ = []
        for n, b in enumerate(blocks):
            l = b[-1]
            s = []
            if l.kind == "branch":
                s.append(lab[l.target])
                if not l.uncond and n + 1 < len(blocks):
                    s.append(n + 1)
            elif l.kind != "end" and n + 1 < len(blocks):
                s.append(n + 1)
            succ.append(s)
        ent = [None] * len(blocks)
        ent[0] = St()
        outs = [None] * len(blocks)
        work = [0]
        guard = 0
        while work:
            guard += 1
            assert guard < 5000
            n = min(work)
            work.remove(n)
            s = ent[n].copy()
            o = []
            for i in blocks[n]:
                step(s, i, o)
            outs[n] = o
            for m in succ[n]:
                if ent[m] is None:
                    ent[m] = s.copy()
                    ch = True
                else:
                    k0 = ent[m].key()
                    ent[m].merge(s)
                    ch = ent[m].key() != k0
                if ch and m not in work:
                    work.append(m)
        res = []
        for n, b in enumerate(blocks):
            res += outs[n] if outs[n] is not None else [i.text for i in b if i.kind != "pwait"]
        return res


def W(need):
    flat = []
    for x in need:
        rr = regs_of(x)
        flat += rr if rr else [x]
    return Ins("WAIT", need=flat)


def vr(a, n=4, p="v"):
    return f"{p}[{a}:{a + n - 1}]" if n > 1 else f"{p}{a}"


def ar(a, n=4):
    return vr(a, n, "a")


def sr(a, n=2):
    return vr(a, n, "s")


def cost(i):
    k = i.kind
    if k == "trans":
        return 8
    if k in ("pwait",):
        return 4
    return 4
```

```python
from asmlib import *

MB = 1 << 20
WS_Q = 0
WS_KV = 2 * MB
WS_H = 6 * MB
WS_WDT = 13 * MB
WS_WOT = WS_WDT + 7 * 112 * 2048
WS_OF = 16 * MB
WS_G = 18 * MB
WS_T = 24 * MB
WS_SIZE = 0x10000000
X_BYTES = 2048 * 896
WQKV_BYTES = 448 * 2688
WO_BYTES = 448 * 896
WG_BYTES = 448 * 3584
WD_BYTES = 1792 * 896
LOG2E = 1.4426950408889634

MF = "v_mfma_f32_32x32x16_bf16"


def f32(x):
    import struct
    return "0x%08x" % struct.unpack("<I", struct.pack("<f", x))[0]


def mfma(d, a, b, c):
    return Ins(f"{MF} {d}, {a}, {b}, {c}")


def srd(s, nbytes):
    return [f"s_mov_b32 s{s + 2}, {nbytes}", f"s_mov_b32 s{s + 3}, 0x00020000"]


def icost(i):
    if isinstance(i, str):
        i = Ins(i)
    return 8 if i.kind == "trans" else 4


def spread(slots, items, lo, hi):
    items = [Ins(x) if isinstance(x, str) else x for x in items]
    tot = sum(icost(i) for i in items)
    n = hi - lo + 1
    acc = 0
    for i in items:
        k = lo + min(n - 1, int(acc * n / tot))
        slots[k].append(i)
        acc += icost(i)


class Stamps:
    def __init__(self, on, kidx, s0=64):
        self.on, self.kidx, self.s0, self.n = on, kidx, s0, 0

    def mark(self):
        if not self.on:
            return []
        s = self.s0 + 2 * self.n
        self.n += 1
        return [f"s_memtime s[{s}:{s + 1}]"]

    def dump(self, ws_srd, swave, sblk, v=(1, 2)):
        if not self.on:
            return []
        o = ["s_waitcnt lgkmcnt(0)", f"s_lshl_b32 s100, {sblk}, 8", f"s_lshl_b32 s101, {swave}, 6", "s_add_u32 s100, s100, s101",
             f"s_add_u32 s100, s100, {WS_T + self.kidx * 65536}", f"v_mov_b32 v{v[0]}, s100"]
        for i in range(self.n):
            o += [f"v_mov_b32 v{v[1]}, s{self.s0 + 2 * i}", f"buffer_store_dword v{v[1]}, v{v[0]}, {ws_srd}, 0 offen offset:{4 * i}"]
        return o


def silu_ops(regs, tmp, scale_neg_log2e):
    o = []
    for i in range(0, len(regs), 2):
        a, b, ta, tb = regs[i], regs[i + 1], tmp[i], tmp[i + 1]
        o += [f"v_mul_f32 v{ta}, {scale_neg_log2e}, v{a}", f"v_mul_f32 v{tb}, {scale_neg_log2e}, v{b}",
              f"v_exp_f32 v{ta}, v{ta}", f"v_exp_f32 v{tb}, v{tb}",
              f"v_add_f32 v{ta}, 1.0, v{ta}", f"v_add_f32 v{tb}, 1.0, v{tb}",
              f"v_rcp_f32 v{ta}, v{ta}", f"v_rcp_f32 v{tb}, v{tb}",
              f"v_mul_f32 v{a}, v{a}, v{ta}", f"v_mul_f32 v{b}, v{b}, v{tb}"]
    return o
```

```python
from common import *

X = lambda ks: 16 + 4 * ks
ACC = lambda u, i: 128 + 64 * u + 16 * i
RING = 40
LEAD = 16
TRD = 6
FR = lambda n: 4 * (n % 8)


def tr_reads(n):
    j, i = n >> 2, n & 3
    pos = j % RING
    va = 1 + 2 * (pos >> 4) + (i & 1)
    off = (pos & 15) * 4096 + (i >> 1) * 2048
    return [Ins(f"ds_read_b64_tr_b16 {ar(FR(n), 2)}, v{va} offset:{off}"),
            Ins(f"ds_read_b64_tr_b16 {ar(FR(n) + 2, 2)}, v{va} offset:{off + 512}")]


def dma(j, info):
    va, s, step = info(j)
    return ([Ins(f"s_add_u32 m0, s23, {(j % RING) * 4096}")],
            [Ins(f"buffer_load_dwordx4 v{va}, {sr(s, 4)}, s24 offen lds", tok=f"w{j}")],
            [Ins(x) for x in step])


def base_slots(nslab, info):
    N = 4 * nslab
    sl = [[] for _ in range(N)]
    for n in range(N):
        if n & 1:
            sl[n].append(W([ar(FR(m)) for m in (n + 1, n + 2) if m < N]))
        m = n + TRD
        if m < N:
            if m % 16 == 0:
                g = m // 16
                sl[n].append(W([f"w{j}" for j in range(4 * g, min(4 * g + 4, nslab))]))
                sl[n].append(Ins("s_barrier"))
        if (n & 3) == 0 and (n >> 2) + LEAD < nslab:
            sl[n] = dma((n >> 2) + LEAD, info)[0] + sl[n]
        if m < N:
            sl[n] += tr_reads(m)
        if (n & 3) == 1 and (n >> 2) + LEAD < nslab:
            d = dma((n >> 2) + LEAD, info)
            sl[n] += d[1] + d[2]
    return sl


def centre_ops(ks, scale):
    o = []
    for r in range(4):
        x = X(ks) + r
        t = 192 + 2 * ((4 * ks + r) % 4)
        a = [f"v_dot2_f32_bf16 v{t}, v{x}, s25, v9", f"v_dot2_f32_bf16 v{t + 1}, v{x}, s26, v9"]
        b = []
        if scale:
            b.append(f"v_pk_mul_f32 {vr(t, 2)}, {vr(t, 2)}, v[10:11] op_sel_hi:[1,0]")
        b.append(f"v_cvt_pk_bf16_f32 v{x}, v{t}, v{t + 1}")
        o.append((a, b))
    return o


def centre_stream(scale):
    regs = [x for ks in range(28) for x in centre_ops(ks, scale)]
    seq = []
    for r in range(len(regs) + 2):
        cur = []
        if r < len(regs):
            cur += regs[r][0]
        if r >= 2:
            cur += regs[r - 2][1]
        seq.append(cur)
    return seq


def swiglu(u, pk):
    o = {0: [], 1: []}
    for b in range(2):
        G, U = ACC(u, b), ACC(u, 2 + b)
        for r in range(0, 16, 2):
            g0, g1, u0, u1 = G + r, G + r + 1, U + r, U + r + 1
            if pk:
                o[b] += [f"v_pk_mul_f32 {vr(u0, 2)}, {vr(g0, 2)}, {vr(u0, 2)}",
                         f"v_pk_mul_f32 {vr(g0, 2)}, {vr(g0, 2)}, v[10:11] op_sel_hi:[1,0]",
                         f"v_exp_f32 v{g0}, v{g0}", f"v_exp_f32 v{g1}, v{g1}",
                         None,
                         f"v_pk_fma_f32 {vr(g0, 2)}, {vr(g0, 2)}, v[10:11], v[10:11] op_sel:[0,1,1] op_sel_hi:[1,1,1]",
                         f"v_rcp_f32 v{g0}, v{g0}", f"v_rcp_f32 v{g1}, v{g1}",
                         None,
                         f"v_pk_mul_f32 {vr(u0, 2)}, {vr(u0, 2)}, {vr(g0, 2)}",
                         f"v_cvt_pk_bf16_f32 v{G + r // 2}, v{u0}, v{u1}"]
            else:
                o[b] += [f"v_mul_f32 v{u0}, v{g0}, v{u0}", f"v_mul_f32 v{u1}, v{g1}, v{u1}",
                         f"v_mul_f32 v{g0}, v10, v{g0}", f"v_mul_f32 v{g1}, v10, v{g1}",
                         f"v_exp_f32 v{g0}, v{g0}", f"v_exp_f32 v{g1}, v{g1}",
                         f"v_fma_f32 v{g0}, v{g0}, v11, v11", f"v_fma_f32 v{g1}, v{g1}, v11, v11",
                         f"v_rcp_f32 v{g0}, v{g0}", f"v_rcp_f32 v{g1}, v{g1}",
                         f"v_mul_f32 v{u0}, v{u0}, v{g0}", f"v_mul_f32 v{u1}, v{u1}, v{g1}",
                         f"v_cvt_pk_bf16_f32 v{G + r // 2}, v{u0}, v{u1}"]
            if r in (6, 14):
                s = r >> 3
                o[b].append(f"buffer_store_dwordx4 {vr(G + 4 * s)}, v0, s[16:19], s{29 + 2 * u + b} offen offset:{s * 2048}")
    if pk:
        res = []
        a = [x for x in o[0] if x]
        b = [x for x in o[1] if x]
        for x, y in zip(a, b):
            res += [x, y]
        return res
    return o[0] + o[1]


def start_stream(p, sl, mf, cs):
    for n in range(TRD):
        p(tr_reads(n))
    for r in range(6):
        p(cs[r])
    for ks in range(27):
        items = [x for r in range(4 * ks + 6, 4 * ks + 10) if r < len(cs) for x in cs[r]]
        spread(sl, items, 4 * ks, 4 * ks + 3)
    p.wait([ar(FR(0)), ar(FR(1))])


def gen_p1(cfg):
    p = Prog()
    st = Stamps(cfg.get("stamps"), 0)
    pk = cfg.get("pk", False)
    p(st.mark())
    p("""
    s_cmp_ge_u32 s2, 256
    s_cbranch_scc1 P1_END
    s_load_dwordx2 s[4:5], s[0:1], 0
    s_load_dwordx2 s[12:13], s[0:1], 8
    s_load_dwordx4 s[40:43], s[0:1], 32
    s_load_dwordx2 s[16:17], s[0:1], 72
    s_load_dwordx2 s[44:45], s[0:1], 48
    s_load_dwordx2 s[46:47], s[0:1], 16
    v_lshrrev_b32 v1, 6, v0
    v_and_b32 v13, 63, v0
    v_readfirstlane_b32 s20, v1
    s_and_b32 s35, s2, 7
    s_lshr_b32 s36, s2, 3
    """)
    if cfg.get("map", 2) == 2:
        p("""
        s_and_b32 s21, s35, 1
        s_lshl_b32 s21, s21, 3
        s_and_b32 s37, s36, 7
        s_add_u32 s21, s21, s37
        s_lshr_b32 s22, s35, 1
        s_lshl_b32 s22, s22, 2
        s_lshr_b32 s37, s36, 3
        s_add_u32 s22, s22, s37
        """)
    else:
        p("""
        s_and_b32 s21, s35, 3
        s_lshl_b32 s21, s21, 2
        s_and_b32 s37, s36, 3
        s_add_u32 s21, s21, s37
        s_lshr_b32 s22, s35, 2
        s_lshr_b32 s37, s36, 2
        s_lshl_b32 s37, s37, 1
        s_add_u32 s22, s22, s37
        """)
    p(srd(4, X_BYTES))
    p(f"""
    v_lshrrev_b32 v14, 3, v13
    v_lshrrev_b32 v15, 4, v13
    v_and_b32 v9, 7, v13
    v_xor_b32 v10, v9, v15
    v_lshlrev_b32 v10, 4, v10
    v_mul_u32_u24 v11, 896, v14
    v_add_u32 v128, v10, v11
    v_xor_b32 v129, 64, v128
    v_add_u32 v130, 14336, v128
    v_add_u32 v129, 7168, v129
    v_add_u32 v131, 14336, v129
    s_lshl_b32 s48, s21, 2
    s_add_u32 s48, s48, s20
    s_mul_i32 s35, s48, {32 * 896}
    s_mul_i32 s28, s20, 28672
    s_add_u32 s28, s28, 49152
    s_lshl_b32 s23, s20, 10
    """)
    for line in range(7):
        for b in range(4):
            p(f"s_add_u32 m0, s28, {(line * 4 + b) * 1024 - line * 128}")
            p(f"buffer_load_dwordx4 v{128 + b}, s[4:7], s35 offen offset:{line * 128} lds", tok=f"x{line}")
    p(f"""
    v_and_b32 v10, 1, v15
    v_lshlrev_b32 v10, 2, v10
    v_xor_b32 v10, v9, v10
    v_lshlrev_b32 v10, 4, v10
    v_mul_u32_u24 v8, 2688, v14
    v_add_u32 v8, v8, v10
    s_and_b32 s36, s20, 1
    s_lshr_b32 s37, s20, 1
    """)
    p(srd(12, WQKV_BYTES) + srd(16, WS_SIZE))
    common2 = f"""
    v_and_b32 v140, 31, v13
    v_lshrrev_b32 v141, 5, v13
    v_lshlrev_b32 v0, 4, v13
    v_bfe_u32 v142, v13, 2, 2
    v_lshl_add_u32 v143, v141, 3, v142
    v_lshlrev_b32 v143, 7, v143
    v_bfe_u32 v144, v13, 4, 1
    v_bfe_u32 v145, v13, 1, 1
    v_lshl_add_u32 v144, v144, 1, v145
    v_lshrrev_b32 v142, 1, v142
    v_lshlrev_b32 v142, 2, v142
    v_xor_b32 v144, v144, v142
    v_lshl_add_u32 v143, v144, 4, v143
    v_and_b32 v144, 1, v13
    v_lshl_add_u32 v1, v144, 3, v143
    v_xor_b32 v2, 64, v1
    v_add_u32 v3, 0x10000, v1
    v_add_u32 v4, 0x10000, v2
    v_add_u32 v5, 0x20000, v1
    v_add_u32 v6, 0x20000, v2
    v_bfe_u32 v142, v13, 1, 3
    v_xor_b32 v142, v142, v141
    v_lshlrev_b32 v142, 4, v142
    v_lshl_add_u32 v142, v140, 7, v142
    v_add_u32 v132, s28, v142
    v_xor_b32 v133, 32, v132
    v_xor_b32 v134, 64, v132
    v_xor_b32 v135, 0x60, v132
    v_mov_b32 v136, 0
    v_mov_b32 v137, 0
    v_mov_b32 v138, 0
    v_mov_b32 v139, 0
    s_movk_i32 s25, 0x3f80
    s_mov_b32 s26, 0x3f800000
    s_mov_b32 s27, 0x3f803f80
    """

    def stats():
        def dots(line):
            for r in range(16):
                x = 16 + 16 * line + r
                p(f"v_dot2c_f32_bf16 v{136 + (r & 1)}, s27, v{x}\nv_dot2c_f32_bf16 v{138 + (r & 1)}, v{x}, v{x}")
        for line in range(7):
            p.wait([f"x{line}"])
            for c in range(4):
                p(f"ds_read_b128 {vr(X(4 * line + c))}, v{132 + c} offset:{line * 4096}")
            if line:
                dots(line - 1)
        p(st.mark())
        dots(6)
        p(f"""
        v_add_f32 v136, v136, v137
        v_add_f32 v138, v138, v139
        v_mov_b32 v137, v136
        v_mov_b32 v139, v138
        v_permlane32_swap_b32 v136, v137
        v_permlane32_swap_b32 v138, v139
        v_add_f32 v136, v136, v137
        v_add_f32 v138, v138, v139
        v_mul_f32 v9, {f32(-1.0 / 448)}, v136
        v_mul_f32 v138, {f32(1.0 / 448)}, v138
        v_fma_f32 v138, -v9, v9, v138
        v_max_f32 v138, 0, v138
        v_add_f32 v11, {f32(1e-5)}, v138
        v_rsq_f32 v12, v11
        """)

    def first_slabs(info, lo, hi):
        for j in range(lo, hi):
            d = dma(j, info)
            p(d[0] + d[1] + d[2])

    def run(sl, mf):
        for n in range(len(sl)):
            p(mf(n))
            p(sl[n])

    p("s_cmp_ge_u32 s22, 14\ns_cbranch_scc1 P1_LIGHT")
    p(f"""
    v_mul_u32_u24 v7, 3584, v14
    v_add_u32 v7, v7, v10
    s_cmp_eq_u32 s37, 0
    s_cselect_b32 s8, s40, s42
    s_cselect_b32 s9, s41, s43
    s_mul_i32 s24, s36, 28672
    s_lshl_b32 s38, s22, 8
    s_add_u32 s24, s24, s38
    s_mul_i32 s49, s20, {8 * 2688}
    s_lshl_b32 s38, s22, 7
    s_add_u32 s49, s49, s38
    """)
    p(srd(8, WG_BYTES))

    def hinfo(j):
        if j < 56:
            step = [f"s_add_u32 s24, s24, {16 * 3584}"]
            if j == 27:
                step = [f"s_sub_u32 s24, s24, {27 * 16 * 3584 - 128}"]
            if j == 55:
                step = ["s_mov_b32 s24, s49"]
            return 7, 8, step
        return 8, 12, [f"s_add_u32 s24, s24, {32 * 2688}"]

    first_slabs(hinfo, 0, 12)
    p(common2)
    p(f"""
    s_lshr_b32 s38, s48, 1
    s_mul_i32 s29, s38, {112 * 2048}
    s_lshl_b32 s38, s36, 10
    s_add_u32 s29, s29, s38
    s_lshl_b32 s38, s22, 14
    s_add_u32 s29, s29, s38
    s_add_u32 s29, s29, {WS_H}
    s_add_u32 s30, s29, 4096
    s_add_u32 s31, s29, 8192
    s_add_u32 s32, s29, 12288
    s_cmp_lt_u32 s22, 7
    s_cselect_b32 s34, 17, 18
    s_cselect_b32 s38, 0, 7
    s_cselect_b32 s33, {WS_Q}, {WS_KV}
    s_cselect_b32 s50, {f32(28 ** -0.5 * LOG2E)}, 1.0
    s_sub_u32 s38, s22, s38
    s_lshl_b32 s38, s38, 4
    s_sub_u32 s39, s34, 6
    s_lshl_b32 s39, s48, s39
    s_add_u32 s33, s33, s39
    v_add_u32 v142, s38, v141
    v_lshlrev_b32 v143, 3, v140
    v_lshlrev_b32 v144, 4, v140
    v_add_u32 v144, 0x100, v144
    """)
    for k in range(8):
        p(f"""
        v_add_u32 v145, {2 * k}, v142
        v_mul_u32_u24 v146, 147, v145
        v_lshrrev_b32 v146, 10, v146
        v_mad_i32_i24 v145, v146, -7, v145
        v_cmp_eq_u32 vcc, 6, v145
        v_lshrrev_b32 v147, 1, v145
        v_lshl_add_u32 v147, v147, 9, v144
        v_and_b32 v145, 1, v145
        v_lshl_add_u32 v147, v145, 3, v147
        v_cndmask_b32 v147, v147, v143, vcc
        v_lshl_add_u32 v147, v146, s34, v147
        v_accvgpr_write_b32 a{32 + k}, v147
        """)
    p(st.mark())
    stats()
    p(f"v_mul_f32 v10, {f32(-LOG2E)}, v12\nv_mul_f32 v12, s50, v12")
    p.wait([f"w{j}" for j in range(4)])
    p("s_barrier")
    first_slabs(hinfo, 12, 16)
    sl = base_slots(70, hinfo)
    start_stream(p, sl, None, centre_stream(False))
    spread(sl, swiglu(0, pk), 114, 222)
    spread(sl, swiglu(1, pk) + [f"v_accvgpr_read_b32 v{160 + k}, a{32 + k}" for k in range(8)], 226, 277)

    def hm(n):
        j, i = n >> 2, n & 3
        if j < 56:
            u, ks = divmod(j, 28)
            a = vr(ACC(u, i), 16)
            return mfma(a, ar(FR(n)), vr(X(ks)), "0" if ks == 0 else a)
        ks = 2 * (j - 56) + (i >> 1)
        a = vr(ACC(0, i & 1), 16)
        return mfma(a, ar(FR(n)), vr(X(ks)), "0" if ks == 0 else a)

    p(st.mark())
    sl[111] += [Ins(x) for x in st.mark()]
    sl[223] += [Ins(x) for x in st.mark()]
    run(sl, hm)
    p(st.mark())
    for b in range(2):
        for rq in range(4):
            a = ACC(0, b) + 4 * rq
            p(f"""
            v_pk_mul_f32 {vr(a, 2)}, {vr(a, 2)}, v[12:13] op_sel_hi:[1,0]
            v_pk_mul_f32 {vr(a + 2, 2)}, {vr(a + 2, 2)}, v[12:13] op_sel_hi:[1,0]
            v_cvt_pk_bf16_f32 v{a}, v{a}, v{a + 1}
            v_cvt_pk_bf16_f32 v{a + 1}, v{a + 2}, v{a + 3}
            buffer_store_dwordx2 {vr(a, 2)}, v{160 + 4 * b + rq}, s[16:19], s33 offen
            """)
    p(st.mark())
    p(st.dump("s[16:19]", "s20", "s2"))
    p("P1_END:\ns_endpgm")
    st.n = 1
    p("P1_LIGHT:")
    p(f"""
    s_sub_u32 s38, s22, 14
    s_mul_i32 s51, s38, 192
    s_mul_i32 s24, s36, {8 * 2688}
    s_lshl_b32 s39, s37, 7
    s_add_u32 s24, s24, s39
    s_lshl_b32 s39, s51, 1
    s_add_u32 s24, s24, s39
    s_add_u32 s24, s24, 1792
    """)

    def linfo(j):
        step = [f"s_add_u32 s24, s24, {16 * 2688}"]
        if j == 27:
            step = [f"s_sub_u32 s24, s24, {27 * 16 * 2688 - 256}"]
        return 8, 12, step

    first_slabs(linfo, 0, 12)
    p(common2)
    p(f"""
    v_mul_u32_u24 v7, 896, v14
    v_add_u32 v7, v7, v10
    s_lshl_b32 s38, s38, 4
    s_add_u32 s38, s38, s21
    s_lshl_b32 s38, s38, 2
    s_add_u32 s38, s38, s20
    s_lshl_b32 s52, s38, 14
    s_add_u32 s52, s52, {WS_WDT}
    s_mul_i32 s39, s38, 4682
    s_lshr_b32 s39, s39, 16
    s_mul_i32 s53, s39, 14
    s_sub_u32 s53, s38, s53
    s_mul_i32 s53, s53, {128 * 896}
    s_lshl_b32 s39, s39, 7
    s_add_u32 s53, s53, s39
    s_sub_u32 s39, s38, 98
    s_and_b32 s54, s39, 3
    s_mul_i32 s54, s54, {4 * 28 * 896}
    s_lshr_b32 s39, s39, 2
    s_lshl_b32 s39, s39, 7
    s_add_u32 s54, s54, s39
    s_cmp_lt_u32 s38, 98
    s_cselect_b32 s53, s53, s54
    s_cselect_b32 s54, 1, 0
    s_cselect_b32 s8, s44, s46
    s_cselect_b32 s9, s45, s47
    s_lshl_b32 s10, s54, 1
    s_lshl_b32 s10, {WO_BYTES}, s10
    s_lshl_b32 s54, 3584, s54
    s_mov_b32 s11, 0x00020000
    s_lshl_b32 s55, s20, 14
    s_add_u32 s55, s55, 0x10000
    s_lshl_b32 s33, s48, 12
    s_add_u32 s33, s33, {WS_KV + 2048}
    v_add_u32 v142, s51, v140
    v_lshlrev_b32 v143, 9, v141
    v_bfrev_b32 v144, 1
    """)
    for k in range(8):
        p(f"""
        v_add_u32 v145, {32 * k}, v142
        v_lshrrev_b32 v146, 2, v145
        v_mul_u32_u24 v146, 147, v146
        v_lshrrev_b32 v146, 10, v146
        v_mul_u32_u24 v147, 28, v146
        v_sub_u32 v145, v145, v147
        v_cmp_eq_u32 vcc, 27, v145
        v_lshl_add_u32 v147, v145, 4, v143
        v_lshl_add_u32 v147, v146, 18, v147
        v_accvgpr_write_b32 a{32 + k}, v147
        v_cndmask_b32 v147, v144, v147, vcc
        v_accvgpr_write_b32 a{40 + k}, v147
        """)
    for r in range(4):
        p(f"v_accvgpr_write_b32 a{48 + r}, s27")
    p(f"v_lshlrev_b32 v14, 9, v141\nv_sub_u32 v14, v1, v14\nv_add_u32 v14, s55, v14\nv_xor_b32 v15, 64, v14")
    p(st.mark())
    stats()
    p("v_mov_b32 v10, v12")
    p.wait([f"w{j}" for j in range(4)])
    p("s_barrier")
    first_slabs(linfo, 12, 16)
    sl = base_slots(56, linfo)
    start_stream(p, sl, None, centre_stream(True))

    def vepi(u):
        o = []
        for i in range(4):
            a = ACC(u, i)
            o += [f"v_accvgpr_read_b32 v12, a{32 + 4 * u + i}", f"v_accvgpr_read_b32 v13, a{40 + 4 * u + i}"]
            for r in range(8):
                o.append(f"v_cvt_pk_bf16_f32 v{a + r}, v{a + 2 * r}, v{a + 2 * r + 1}")
            for s in range(2):
                o.append(f"buffer_store_dwordx4 {vr(a + 4 * s)}, v12, s[16:19], s33 offen offset:{1024 * s}")
                o.append(f"buffer_store_dwordx4 a[48:51], v13, s[16:19], s33 offen offset:{1024 * s + 16}")
        return o

    spread(sl, vepi(0), 114, 140)
    for t in range(16):
        n, half = t >> 1, t & 1
        k = 4 * 40 + 2 * t
        sl[k].insert(0, Ins(f"s_add_u32 m0, s55, {t * 1024}"))
        sl[k].append(Ins(f"buffer_load_dwordx4 v7, s[8:11], s53 offen lds", tok="tp"))
        sl[k].append(Ins(f"s_add_u32 s53, s53, {'s54' if t % 4 == 3 else 7168}"))

    def lm(n):
        j, i = n >> 2, n & 3
        u, ks = divmod(j, 28)
        a = vr(ACC(u, i), 16)
        return mfma(a, vr(X(ks)), ar(FR(n)), "0" if ks == 0 else a)

    p(st.mark())
    sl[111] += [Ins(x) for x in st.mark()]
    run(sl, lm)
    p(st.mark())
    p.wait(["tp"])
    for n in range(8):
        for b in range(2):
            d = 16 + 8 * n + 4 * b
            p(f"ds_read_b64_tr_b16 {vr(d, 2)}, v{14 + b} offset:{n * 2048}")
            p(f"ds_read_b64_tr_b16 {vr(d + 2, 2)}, v{14 + b} offset:{n * 2048 + 1024}")
    p(vepi(1))
    for n in range(8):
        for b in range(2):
            d = 16 + 8 * n + 4 * b
            p(f"buffer_store_dwordx4 {vr(d)}, v0, s[16:19], s52 offen offset:{(n & 1) * 2048 + b * 1024}")
        if n & 1:
            p("s_add_u32 s52, s52, 4096")
    p(st.mark())
    p(st.dump("s[16:19]", "s20", "s2"))
    p("s_endpgm")
    return dict(name="p1_kernel", code=p.finalize(), grid=256, lds=163840, vgpr=256, agpr=64)
```

```python
from common import *
from p3 import tile_map

S = lambda n: 16 + 16 * (n & 1)
P = 48
Q = lambda j, ks: 56 + 8 * j + 4 * ks
KV = lambda slot, part: 88 + 16 * slot + 4 * part
O = lambda j: ar(16 * j, 16)
D = lambda j: ar(64 + 16 * j, 16)
DR = lambda s, part: 128 + 16 * s + 4 * part
DSRD = {0: 12, 1: 16, 2: 20, 3: 24}


def kv_load(slot, part, t):
    va = (5 + t) if part == 1 else (1 + t)
    off = {0: 768, 1: 0, 2: 2048, 3: 3072}[part]
    return Ins(f"buffer_load_dwordx4 {vr(KV(slot, part))}, v{va}, s[8:11], 0 offen offset:{off}")


def d_load(s, part, kk):
    return Ins(f"buffer_load_dwordx4 {ar(DR(s, part))}, v{1 + (kk >> 1)}, {sr(DSRD[part], 4)}, 0 offen offset:{(kk & 1) * 2048}")


def gen_p2(cfg):
    p = Prog()
    st = Stamps(cfg.get("stamps"), 1)
    p(st.mark())
    p("""
    s_cmp_ge_u32 s2, 256
    s_cbranch_scc1 P2_END
    s_load_dwordx2 s[4:5], s[0:1], 72
    v_lshrrev_b32 v1, 6, v0
    v_and_b32 v13, 63, v0
    v_readfirstlane_b32 s28, v1
    v_lshlrev_b32 v1, 4, v13
    v_and_b32 v14, 31, v13
    v_lshlrev_b32 v5, 3, v14
    v_add_u32 v15, 0x100, v1
    v_cmp_gt_u32 vcc, 32, v13
    s_and_b32 s29, s2, 7
    s_lshl_b32 s29, s29, 1
    s_bfe_u32 s36, s2, 0x10003
    s_add_u32 s29, s29, s36
    s_lshr_b32 s30, s2, 4
    v_cndmask_b32 v5, v5, v15, vcc
    s_mov_b64 s[44:45], vcc
    """)
    for t in range(1, 4):
        p(f"v_add_u32 v{1 + t}, {4096 * t}, v1\nv_add_u32 v{5 + t}, {4096 * t}, v5")
    tile_map(p, "s31", "s32", "s33", "s36")
    p(srd(4, WS_SIZE))
    p(f"""
    s_lshl_b32 s36, s29, 17
    s_lshl_b32 s37, s30, 13
    s_add_u32 s36, s36, s37
    """)
    for j in range(4):
        p(f"s_xor_b32 s37, s28, {j}\ns_lshl_b32 s37, s37, 11\ns_add_u32 s{46 + j}, s36, s37")
    p(f"""
    s_lshl_b32 s36, s29, 18
    s_add_u32 s50, s36, {WS_KV}
    s_lshl_b32 s37, s28, 16
    s_add_u32 s36, s50, s37
    s_add_u32 s8, s4, s36
    s_addc_u32 s9, s5, 0
    """)
    p(srd(8, 65536))
    ql = lambda j: [f"buffer_load_dwordx4 {vr(Q(j, 0))}, v1, s[4:7], s{46 + j} offen offset:768",
                    f"buffer_load_dwordx4 {vr(Q(j, 1))}, v5, s[4:7], s{46 + j} offen"]
    p(ql(0))
    p([kv_load(0, 0, 0), kv_load(0, 1, 0)])
    p(ql(1))
    p([kv_load(0, 2, 0), kv_load(0, 3, 0)])
    p(ql(2) + ql(3))
    p(f"""
    s_cmp_lt_u32 s33, 28
    s_cselect_b32 s34, 14336, 0
    s_lshl_b32 s14, s34, 2
    s_cselect_b32 s42, {WS_SIZE}, 0
    s_mul_i32 s36, s32, {112 * 2048}
    s_mul_i32 s37, s28, {28 * 2048}
    s_add_u32 s36, s36, s37
    s_add_u32 s36, s36, {WS_WDT}
    s_and_b32 s38, s28, 1
    s_lshl_b32 s38, s38, 10
    s_add_u32 s36, s36, s38
    s_add_u32 s12, s4, s36
    s_addc_u32 s13, s5, 0
    s_xor_b32 s36, s36, 0x400
    s_add_u32 s16, s4, s36
    s_addc_u32 s17, s5, 0
    s_mul_i32 s36, s31, {112 * 2048}
    s_add_u32 s36, s36, s37
    s_add_u32 s36, s36, {WS_H}
    s_lshr_b32 s38, s28, 1
    s_lshl_b32 s38, s38, 10
    s_add_u32 s36, s36, s38
    s_add_u32 s20, s4, s36
    s_addc_u32 s21, s5, 0
    s_xor_b32 s36, s36, 0x400
    s_add_u32 s24, s4, s36
    s_addc_u32 s25, s5, 0
    s_mov_b32 s18, s14
    s_mov_b32 s22, s14
    s_mov_b32 s26, s14
    s_mov_b32 s15, 0x00020000
    s_mov_b32 s19, 0x00020000
    s_mov_b32 s23, 0x00020000
    s_mov_b32 s27, 0x00020000
    s_mov_b32 s40, s4
    s_mov_b32 s41, s5
    s_mov_b32 s43, 0x00020000
    """)
    dl = lambda s: [d_load(s, part, s) for part in (0, 2, 1, 3)]
    p(dl(0) + dl(1) + dl(2))
    p([kv_load(1, 0, 1), kv_load(1, 1, 1)] + dl(3) + [kv_load(1, 2, 1), kv_load(1, 3, 1)] + dl(4))
    p([kv_load(2, 0, 2), kv_load(2, 1, 2)] + dl(5) + [kv_load(2, 2, 2), kv_load(2, 3, 2)])
    p("s_add_u32 s8, s8, 12288\ns_addc_u32 s9, s9, 0\ns_sub_u32 s10, s10, 12288")
    p("s_cmp_lt_u32 s33, 28\ns_cselect_b32 s36, 12288, 0")
    for s in DSRD.values():
        p(f"s_add_u32 s{s}, s{s}, 12288\ns_addc_u32 s{s + 1}, s{s + 1}, 0\ns_sub_u32 s{s + 2}, s{s + 2}, s36")
    for r in range(128):
        p(f"v_accvgpr_write_b32 a{r}, 0")
    for r in [S(1) + 14, S(1) + 15, P + 4, P + 5, P + 6] + [KV(3, 3) + i for i in range(4)]:
        p(f"v_mov_b32 v{r}, 0")
    p("s_mov_b32 s35, 4")
    p(st.mark())
    zq = lambda j: [f"v_cndmask_b32 v{Q(j, 1) + i}, 0, v{Q(j, 1) + i}, s[44:45]" for i in (2, 3)]
    p(zq(0))
    p(mfma(vr(S(0), 16), vr(KV(0, 0)), vr(Q(0, 0)), "0"))
    p(mfma(vr(S(0), 16), vr(KV(0, 1)), vr(Q(0, 1)), vr(S(0), 16)))
    p(zq(1) + zq(2) + zq(3))
    p(st.mark())
    p("P2_LOOP:")
    salu = []
    for s in DSRD.values():
        salu.append([f"s_add_u32 s{s}, s{s}, 14336", f"s_addc_u32 s{s + 1}, s{s + 1}, 0"])
        salu.append([f"s_sub_u32 s{s + 2}, s{s + 2}, s34"])
    for j in range(16):
        s0, s1 = S(j), S(j + 1)
        e = lambda i: f"v_exp_f32 v{s0 + i}, v{s0 + i}"
        c = lambda i: f"v_cvt_pk_bf16_f32 v{P + i}, v{s0 + 2 * i}, v{s0 + 2 * i + 1}"
        c7 = f"v_cvt_pk_bf16_f32 v{P + 7}, v{s1 + 14}, v{s1 + 15}"
        grp = [[e(0), c7, e(1), e(2)], [c(0), e(3), e(4), c(1)], [e(5), e(6), c(2), e(7)],
               [e(8), c(3), e(9), e(10)], [c(4), e(11), e(12), c(5)], [e(13), e(14), c(6), e(15)]]
        tt, qb = j >> 2, j & 3
        pt, pq = ((j - 1) >> 2) & 3, (j - 1) & 3
        nt, nq = ((j + 1) >> 2) & 3, (j + 1) & 3
        mm = [mfma(O(pq), vr(KV(pt, 3)), vr(P + 4), O(pq)),
              mfma(vr(s1, 16), vr(KV(nt, 0)), vr(Q(nq, 0)), "0"),
              mfma(vr(s1, 16), vr(KV(nt, 1)), vr(Q(nq, 1)), vr(s1, 16)),
              mfma(O(qb), vr(KV(tt, 2)), vr(P), O(qb)), None, None]
        after = [[] for _ in range(6)]
        need = []
        if qb == 3:
            need += [vr(KV(nt, 0)), vr(KV(nt, 1))]
        if qb == 0:
            need += [vr(KV(tt, 2)), vr(KV(tt, 3))]
        if j < 14:
            k, t = j >> 1, j & 1
            mm[4] = mfma(D(2 * t), ar(DR(k, 0)), ar(DR(k, 2 + t)), D(2 * t))
            mm[5] = mfma(D(2 * t + 1), ar(DR(k, 1)), ar(DR(k, 2 + t)), D(2 * t + 1))
            if t == 0:
                need += [ar(DR(k, i)) for i in range(4)]
            after[2].append(d_load((k - 1) % 7, t, k))
            after[3].append(d_load((k - 1) % 7, 2 + t, k))
        if need:
            after[0].append(W(need))
        after[1].append(kv_load((tt + 3) & 3, qb, tt))
        if j == 13:
            after[4] += salu[0]; after[5] += salu[4]
        if j == 14:
            after[0] += salu[1]; after[2] += salu[2]; after[3] += salu[6]; after[4] += salu[3] + salu[5] + salu[7]
        if j == 15:
            after[2] += ["s_add_u32 s8, s8, 16384", "s_addc_u32 s9, s9, 0"]
            after[3] += ["s_sub_u32 s10, s10, 16384", "s_sub_u32 s35, s35, 1"]
            after[4] += ["s_cmp_lg_u32 s35, 0"]
        for g in range(6):
            p(grp[g])
            if mm[g] is not None:
                p(mm[g])
            p(after[g])
    p("s_cbranch_scc1 P2_LOOP")
    p(st.mark())
    for j in range(1, 4):
        p(f"""
        s_xor_b32 s36, s28, {j}
        s_mul_i32 s36, s36, 12288
        s_add_u32 s36, s36, {(j - 1) * 4096}
        v_add_u32 v{8 + j}, s36, v1
        """)
    p(f"v_cvt_pk_bf16_f32 v{P + 7}, v{S(1) + 14}, v{S(1) + 15}")
    p("s_mul_i32 s36, s28, 12288\nv_add_u32 v12, s36, v1")
    p(mfma(O(3), vr(KV(3, 3)), vr(P + 4), O(3)))
    for base, acc in ((0, 64), (49152, 0)):
        for j in range(1, 4):
            for q in range(4):
                p(f"ds_write_b128 v{8 + j}, {ar(acc + 16 * j + 4 * q)} offset:{base + q * 1024}", tok="xw")
    OA, DA, RD = 160, 176, 88
    for r in range(16):
        p(f"v_accvgpr_read_b32 v{OA + r}, a{r}\nv_accvgpr_read_b32 v{DA + r}, a{64 + r}")
    p.wait(["xw"])
    p("s_barrier")
    for base, rd in ((49152, 88), (0, 192)):
        for j in range(3):
            for q in range(4):
                p(f"ds_read_b128 {vr(rd + 16 * j + 4 * q)}, v12 offset:{base + j * 4096 + q * 1024}")
    p(f"""
    s_lshl_b32 s36, s30, 1
    s_lshr_b32 s37, s28, 1
    s_add_u32 s36, s36, s37
    s_lshl_b32 s36, s36, 16
    s_lshl_b32 s37, s29, 12
    s_add_u32 s36, s36, s37
    s_and_b32 s37, s28, 1
    s_lshl_b32 s37, s37, 10
    s_add_u32 s36, s36, s37
    s_add_u32 s51, s36, {WS_OF}
    s_lshl_b32 s36, s2, 13
    s_lshl_b32 s37, s28, 11
    s_add_u32 s36, s36, s37
    s_add_u32 s52, s36, {WS_G}
    s_mov_b32 s53, {f32(2.0 ** -60)}
    v_mov_b32 v11, {f32(2.0 ** 60)}
    """)
    for j in range(3):
        for r in range(0, 16, 2):
            p(f"v_pk_add_f32 {vr(OA + r, 2)}, {vr(OA + r, 2)}, {vr(88 + 16 * j + r, 2)}")
    p(f"""
    v_mov_b32 v9, v{OA + 12}
    v_mov_b32 v10, v{OA + 12}
    v_permlane32_swap_b32 v9, v10
    v_med3_f32 v9, v10, s53, v11
    v_cmp_neq_f32 vcc, v9, v10
    s_cbranch_vccnz P2_FB
    P2_NORM:
    v_rcp_f32 v10, v10
    """)
    for j in range(3):
        for r in range(0, 16, 2):
            p(f"v_pk_add_f32 {vr(DA + r, 2)}, {vr(DA + r, 2)}, {vr(192 + 16 * j + r, 2)}")
    for r in range(0, 16, 2):
        p(f"v_pk_mul_f32 {vr(OA + r, 2)}, {vr(OA + r, 2)}, v[10:11] op_sel_hi:[1,0]")
    for r in range(8):
        p(f"v_cvt_pk_bf16_f32 v{16 + r}, v{OA + 2 * r}, v{OA + 2 * r + 1}")
    p(f"""
    v_cndmask_b32 v22, 0, v22, s[44:45]
    v_cndmask_b32 v23, 0, v23, s[44:45]
    buffer_store_dwordx4 v[16:19], v1, s[4:7], s51 offen
    buffer_store_dwordx4 v[20:23], v1, s[4:7], s51 offen offset:2048
    s_mov_b32 s36, {f32(-LOG2E)}
    """)
    p(silu_ops([DA + r for r in range(16)], [192 + r for r in range(16)], "s36"))
    for r in range(8):
        p(f"v_cvt_pk_bf16_f32 v{24 + r}, v{DA + 2 * r}, v{DA + 2 * r + 1}")
    p(f"""
    buffer_store_dwordx4 v[24:27], v1, s[40:43], s52 offen
    buffer_store_dwordx4 v[28:31], v1, s[40:43], s52 offen offset:1024
    """)
    p(st.mark())
    p(st.dump("s[4:7]", "s28", "s2"))
    p("P2_END:\ns_endpgm")
    s0 = S(0)
    kq = [f"buffer_load_dwordx4 {vr(KV(0, 0))}, v1, s[4:7], s36 offen offset:768",
          f"buffer_load_dwordx4 {vr(KV(0, 1))}, v5, s[4:7], s36 offen"]
    qk = [mfma(vr(s0, 16), vr(KV(0, 0)), vr(Q(0, 0)), "0"), mfma(vr(s0, 16), vr(KV(0, 1)), vr(Q(0, 1)), vr(s0, 16))]
    p("P2_FB:\ns_mov_b32 s36, s50\ns_mov_b32 s35, 64\nv_mov_b32 v9, 0xff800000\nP2_FB1:")
    p(kq + qk)
    for r in range(0, 16, 2):
        p(f"v_max3_f32 v9, v9, v{s0 + r}, v{s0 + r + 1}")
    p("""
    s_add_u32 s36, s36, 4096
    s_sub_u32 s35, s35, 1
    s_cmp_lg_u32 s35, 0
    s_cbranch_scc1 P2_FB1
    v_mov_b32 v10, v9
    v_permlane32_swap_b32 v9, v10
    v_max_f32 v9, v9, v10
    s_mov_b32 s36, s50
    s_mov_b32 s35, 64
    """)
    for r in range(16):
        p(f"v_mov_b32 v{OA + r}, 0")
    p("P2_FB2:")
    p(kq)
    p(f"buffer_load_dwordx4 {vr(KV(0, 2))}, v1, s[4:7], s36 offen offset:2048")
    p(f"buffer_load_dwordx4 {vr(KV(0, 3))}, v1, s[4:7], s36 offen offset:3072")
    p(qk)
    for r in range(16):
        p(f"v_sub_f32 v{s0 + r}, v{s0 + r}, v9")
    for r in range(16):
        p(f"v_exp_f32 v{s0 + r}, v{s0 + r}")
    for r in range(8):
        p(f"v_cvt_pk_bf16_f32 v{P + r}, v{s0 + 2 * r}, v{s0 + 2 * r + 1}")
    p(mfma(vr(OA, 16), vr(KV(0, 2)), vr(P), vr(OA, 16)))
    p(mfma(vr(OA, 16), vr(KV(0, 3)), vr(P + 4), vr(OA, 16)))
    p(f"""
    s_add_u32 s36, s36, 4096
    s_sub_u32 s35, s35, 1
    s_cmp_lg_u32 s35, 0
    s_cbranch_scc1 P2_FB2
    v_mov_b32 v9, v{OA + 12}
    v_mov_b32 v10, v{OA + 12}
    v_permlane32_swap_b32 v9, v10
    s_branch P2_NORM
    """)
    return dict(name="p2_kernel", code=p.finalize(), grid=256, lds=98304, vgpr=256, agpr=256)
```

```python
from common import *


def tile_map(p, s_tok, s_col, s_i, t):
    p(f"""
    s_lshr_b32 {s_i}, s2, 3
    s_mul_i32 {t}, {s_i}, 37
    s_lshr_b32 {t}, {t}, 8
    s_and_b32 {s_tok}, s2, 7
    s_lshl_b32 {s_tok}, {s_tok}, 2
    s_add_u32 {s_tok}, {s_tok}, {t}
    s_mul_i32 {t}, {t}, 7
    s_sub_u32 {s_col}, {s_i}, {t}
    """)


def gen_p3(cfg):
    p = Prog()
    st = Stamps(cfg.get("stamps"), 2)
    p(st.mark())
    p("""
    s_cmp_ge_u32 s2, 224
    s_cbranch_scc1 P3_END
    s_load_dwordx2 s[4:5], s[0:1], 72
    s_load_dwordx2 s[8:9], s[0:1], 0
    s_load_dwordx2 s[12:13], s[0:1], 56
    v_lshrrev_b32 v1, 6, v0
    v_and_b32 v13, 63, v0
    v_readfirstlane_b32 s16, v1
    v_lshlrev_b32 v1, 4, v13
    """)
    tile_map(p, "s17", "s18", "s19", "s23")
    p(srd(4, WS_SIZE) + srd(8, X_BYTES) + srd(12, X_BYTES))
    p(f"""
    s_movk_i32 s20, 0x1000
    s_movk_i32 s21, 0x2000
    s_movk_i32 s22, 0x3000
    s_lshl_b32 s23, s16, 14
    s_lshl_b32 s24, s18, 16
    s_add_u32 s24, s24, s23
    s_and_b32 s25, s16, 1
    s_lshl_b32 s26, s25, 10
    s_add_u32 s24, s24, s26
    s_add_u32 s24, s24, {WS_WOT}
    v_add_u32 v2, s24, v1
    s_lshl_b32 s24, s17, 16
    s_add_u32 s24, s24, s23
    s_lshr_b32 s26, s16, 1
    s_lshl_b32 s27, s26, 10
    s_add_u32 s24, s24, s27
    s_add_u32 s24, s24, {WS_OF}
    v_add_u32 v4, s24, v1
    v_xor_b32 v3, 0x400, v2
    v_xor_b32 v5, 0x400, v4
    """)
    F = lambda k, j: 16 + 16 * k + 4 * j
    so = ["0", "s20", "s21", "s22"]
    for k in range(8):
        for j, va in ((0, 2), (2, 4), (1, 3), (3, 5)):
            p(f"buffer_load_dwordx4 {vr(F(k, j))}, v{va}, s[4:7], {so[k >> 1]} offen offset:{(k & 1) * 2048}")
    p(f"""
    s_lshl_b32 s24, s2, 13
    s_lshl_b32 s27, s16, 11
    s_add_u32 s24, s24, s27
    s_add_u32 s24, s24, {WS_G}
    v_add_u32 v6, s24, v1
    buffer_load_dwordx4 v[144:147], v6, s[4:7], 0 offen
    buffer_load_dwordx4 v[148:151], v6, s[4:7], 0 offen offset:1024
    s_lshl_b32 s24, s17, 1
    s_add_u32 s24, s24, s26
    s_mul_i32 s24, s24, {32 * 896}
    s_lshl_b32 s27, s18, 7
    s_add_u32 s24, s24, s27
    s_lshl_b32 s27, s25, 6
    s_add_u32 s24, s24, s27
    v_and_b32 v7, 31, v13
    v_mul_u32_u24 v7, 896, v7
    v_add_u32 v7, s24, v7
    v_lshrrev_b32 v14, 5, v13
    v_lshl_add_u32 v8, v14, 4, v7
    v_lshl_add_u32 v7, v14, 3, v7
    """)
    for rq in range(4):
        p(f"buffer_load_dwordx2 {vr(152 + 2 * rq, 2)}, v7, s[8:11], 0 offen offset:{rq * 16}")
    for j in range(1, 4):
        p(f"""
        s_xor_b32 s24, s16, {j}
        s_mul_i32 s24, s24, 12288
        s_add_u32 s24, s24, {(j - 1) * 4096}
        v_add_u32 v{8 + j}, s24, v1
        """)
    p("s_mul_i32 s24, s16, 12288\nv_add_u32 v12, s24, v1")
    p(st.mark())
    ACC = lambda j: vr(160 + 16 * j, 16)
    for k in range(8):
        for j in (1, 2, 3, 0):
            c, t = j & 1, j >> 1
            p(mfma(ACC(j), vr(F(k, c)), vr(F(k, 2 + t)), "0" if k == 0 else ACC(j)))
    p(st.mark())
    for j in range(1, 4):
        for q in range(4):
            p(f"ds_write_b128 v{8 + j}, {vr(160 + 16 * j + 4 * q)} offset:{q * 1024}", tok="xw")
    p.wait(["xw"])
    p("s_barrier")
    for j in range(3):
        for q in range(4):
            p(f"ds_read_b128 {vr(16 + 16 * j + 4 * q)}, v12 offset:{j * 4096 + q * 1024}")
    for r in range(8):
        p(f"""
        v_lshlrev_b32 v{64 + 2 * r}, 16, v{144 + r}
        v_and_b32 v{65 + 2 * r}, 0xffff0000, v{144 + r}
        v_lshlrev_b32 v{80 + 2 * r}, 16, v{152 + r}
        v_and_b32 v{81 + 2 * r}, 0xffff0000, v{152 + r}
        """)
    for j in range(3):
        for r in range(0, 16, 2):
            p(f"v_pk_add_f32 {vr(160 + r, 2)}, {vr(160 + r, 2)}, {vr(16 + 16 * j + r, 2)}")
    for r in range(0, 16, 2):
        p(f"v_pk_fma_f32 {vr(160 + r, 2)}, {vr(160 + r, 2)}, {vr(64 + r, 2)}, {vr(80 + r, 2)}")
    for r in range(8):
        p(f"v_cvt_pk_bf16_f32 v{96 + r}, v{160 + 2 * r}, v{161 + 2 * r}")
    for h in range(2):
        p(f"""
        v_permlane32_swap_b32 v{96 + 4 * h}, v{98 + 4 * h}
        v_permlane32_swap_b32 v{97 + 4 * h}, v{99 + 4 * h}
        buffer_store_dwordx4 {vr(96 + 4 * h)}, v8, s[12:15], 0 offen offset:{32 * h}
        """)
    p(st.mark())
    p(st.dump("s[4:7]", "s16", "s2"))
    p("P3_END:\ns_endpgm")
    return dict(name="p3_kernel", code=p.finalize(), grid=224, lds=49152, vgpr=224, agpr=0)
```

```python
import sys, json, os
sys.path.insert(0, os.path.dirname(os.path.abspath(__file__)))
from p1 import gen_p1
from p2 import gen_p2
from p3 import gen_p3

REF = "recurrent_scan__mha_block__swiglu_ffn__prompt.s.ref"


def emit(ks):
    head = []
    for l in open(REF).read().split("\n"):
        if l.startswith("; @launch"):
            break
        head.append(l)
    out = head[:]
    for d in ks:
        out.append(f"; @launch kernel={d['name']} grid=({d['grid']},1,1) block=({d.get('block', 256)},1,1) lds={d['lds']}")
    out += ['.amdgcn_target "amdgcn-amd-amdhsa--gfx950"', ".text"]
    seen = set()
    for d in ks:
        K = d["name"]
        if K in seen:
            continue
        seen.add(K)
        out += [f".globl {K}", ".p2align 8", f".type {K},@function", f"{K}:"]
        out += d["code"]
    out.append('.section .rodata,"a"')
    seen = set()
    for d in ks:
        K = d["name"]
        if K in seen:
            continue
        seen.add(K)
        out += [".p2align 6", f".amdhsa_kernel {K}", f"  .amdhsa_next_free_vgpr {d['vgpr'] + d['agpr']}",
                "  .amdhsa_next_free_sgpr 102", f"  .amdhsa_accum_offset {d['vgpr']}",
                "  .amdhsa_group_segment_fixed_size 0", "  .amdhsa_kernarg_size 80", "  .amdhsa_user_sgpr_count 2",
                "  .amdhsa_user_sgpr_kernarg_segment_ptr 1", "  .amdhsa_system_sgpr_workgroup_id_x 1", ".end_amdhsa_kernel"]
    return "\n".join(out) + "\n"


if __name__ == "__main__":
    fn = sys.argv[1]
    cfg = json.loads(sys.argv[2]) if len(sys.argv) > 2 else {}
    ks = [g(cfg) for g, n in ((gen_p1, "1"), (gen_p2, "2"), (gen_p3, "3")) if n in cfg.get("only", "123")]
    open(fn, "w").write(emit(ks))
    for d in ks:
        c = d["code"]
        print(d["name"], "lines", len(c), "nops", sum(1 for x in c if x.startswith("s_nop")), "waits", sum(1 for x in c if x.startswith("s_waitcnt")))
```

```python
from asmlib import *

MB = 1 << 20
WS_Q = 0
WS_KV = 2 * MB
WS_H = 6 * MB
WS_WDT = 13 * MB
WS_WOT = WS_WDT + 7 * 112 * 2048
WS_OF = 16 * MB
WS_G = 18 * MB
WS_T = 24 * MB
WS_SIZE = 0x10000000
X_BYTES = 2048 * 896
WQKV_BYTES = 448 * 2688
WO_BYTES = 448 * 896
WG_BYTES = 448 * 3584
WD_BYTES = 1792 * 896
LOG2E = 1.4426950408889634

MF = "v_mfma_f32_32x32x16_bf16"


def f32(x):
    import struct
    return "0x%08x" % struct.unpack("<I", struct.pack("<f", x))[0]


def mfma(d, a, b, c):
    return Ins(f"{MF} {d}, {a}, {b}, {c}")


def srd(s, nbytes):
    return [f"s_mov_b32 s{s + 2}, {nbytes}", f"s_mov_b32 s{s + 3}, 0x00020000"]


def icost(i):
    if isinstance(i, str):
        i = Ins(i)
    return 8 if i.kind == "trans" else 4


def spread(slots, items, lo, hi):
    items = [Ins(x) if isinstance(x, str) else x for x in items]
    tot = sum(icost(i) for i in items)
    n = hi - lo + 1
    acc = 0
    for i in items:
        k = lo + min(n - 1, int(acc * n / tot))
        slots[k].append(i)
        acc += icost(i)


class Stamps:
    def __init__(self, on, kidx, s0=64):
        self.on, self.kidx, self.s0, self.n = on, kidx, s0, 0

    def mark(self):
        if not self.on:
            return []
        s = self.s0 + 2 * self.n
        self.n += 1
        return [f"s_memtime s[{s}:{s + 1}]"] + (["s_memrealtime s[96:97]"] if self.n == 1 else [])

    def dump(self, ws_srd, swave, sblk, v=(1, 2)):
        if not self.on:
            return []
        o = ["s_waitcnt vmcnt(0)", "s_memrealtime s[98:99]", "s_memtime s[94:95]", "s_waitcnt lgkmcnt(0)", f"s_lshl_b32 s100, {sblk}, 8", f"s_lshl_b32 s101, {swave}, 6", "s_add_u32 s100, s100, s101",
             f"s_add_u32 s100, s100, {WS_T + self.kidx * 65536}", f"v_mov_b32 v{v[0]}, s100"]
        for i in range(self.n):
            o += [f"v_mov_b32 v{v[1]}, s{self.s0 + 2 * i}", f"buffer_store_dword v{v[1]}, v{v[0]}, {ws_srd}, 0 offen offset:{4 * i}"]
        for i, r in ((13, 94), (14, 96), (15, 98)):
            o += [f"v_mov_b32 v{v[1]}, s{r}", f"buffer_store_dword v{v[1]}, v{v[0]}, {ws_srd}, 0 offen offset:{4 * i}"]
        return o


def silu_ops(regs, tmp, scale_neg_log2e):
    o = []
    for i in range(0, len(regs), 2):
        a, b, ta, tb = regs[i], regs[i + 1], tmp[i], tmp[i + 1]
        o += [f"v_mul_f32 v{ta}, {scale_neg_log2e}, v{a}", f"v_mul_f32 v{tb}, {scale_neg_log2e}, v{b}",
              f"v_exp_f32 v{ta}, v{ta}", f"v_exp_f32 v{tb}, v{tb}",
              f"v_add_f32 v{ta}, 1.0, v{ta}", f"v_add_f32 v{tb}, 1.0, v{tb}",
              f"v_rcp_f32 v{ta}, v{ta}", f"v_rcp_f32 v{tb}, v{tb}",
              f"v_mul_f32 v{a}, v{a}, v{ta}", f"v_mul_f32 v{b}, v{b}, v{tb}"]
    return o
```

```python
from common import *

X = lambda ks: 16 + 4 * ks
ACC = lambda u, i: 128 + 64 * u + 16 * i
RING = 40
LEAD = 16
TRD = 6
FR = lambda n: 4 * (n % 8)


def tr_reads(n):
    j, i = n >> 2, n & 3
    pos = j % RING
    va = 1 + 2 * (pos >> 4) + (i & 1)
    off = (pos & 15) * 4096 + (i >> 1) * 2048
    return [Ins(f"ds_read_b64_tr_b16 {ar(FR(n), 2)}, v{va} offset:{off}"),
            Ins(f"ds_read_b64_tr_b16 {ar(FR(n) + 2, 2)}, v{va} offset:{off + 512}")]


def dma(j, info):
    va, s, step = info(j)
    return ([Ins(f"s_add_u32 m0, s23, {(j % RING) * 4096}")],
            [Ins(f"buffer_load_dwordx4 v{va}, {sr(s, 4)}, s24 offen lds", tok=f"w{j}")],
            [Ins(x) for x in step])


def base_slots(nslab, info):
    N = 4 * nslab
    sl = [[] for _ in range(N)]
    for n in range(N):
        if n & 1:
            sl[n].append(W([ar(FR(m)) for m in (n + 1, n + 2) if m < N]))
        m = n + TRD
        if m < N:
            if m % 16 == 0:
                g = m // 16
                sl[n].append(W([f"w{j}" for j in range(4 * g, min(4 * g + 4, nslab))]))
                sl[n].append(Ins("s_barrier"))
        if (n & 3) == 0 and (n >> 2) + LEAD < nslab:
            sl[n] = dma((n >> 2) + LEAD, info)[0] + sl[n]
        if m < N:
            sl[n] += tr_reads(m)
        if (n & 3) == 1 and (n >> 2) + LEAD < nslab:
            d = dma((n >> 2) + LEAD, info)
            sl[n] += d[1] + d[2]
    return sl


def centre_ops(ks, scale):
    o = []
    for r in range(4):
        x = X(ks) + r
        t = 192 + 2 * ((4 * ks + r) % 4)
        a = [f"v_dot2_f32_bf16 v{t}, v{x}, s25, v9", f"v_dot2_f32_bf16 v{t + 1}, v{x}, s26, v9"]
        b = []
        if PLAIN:
            a = [f"v_lshlrev_b32 v{t}, 16, v{x}", f"v_and_b32 v{t + 1}, 0xffff0000, v{x}"]
            if scale:
                b += [f"v_fma_f32 v{t}, v{t}, v10, v11", f"v_fma_f32 v{t + 1}, v{t + 1}, v10, v11"]
            else:
                b += [f"v_add_f32 v{t}, v{t}, v9", f"v_add_f32 v{t + 1}, v{t + 1}, v9"]
        elif scale:
            b.append(f"v_pk_mul_f32 {vr(t, 2)}, {vr(t, 2)}, v[10:11] op_sel_hi:[1,0]")
        b.append(f"v_cvt_pk_bf16_f32 v{x}, v{t}, v{t + 1}")
        o.append((a, b))
    return o


def centre_stream(scale):
    regs = [x for ks in range(28) for x in centre_ops(ks, scale)]
    seq = []
    for r in range(len(regs) + 2):
        cur = []
        if r < len(regs):
            cur += regs[r][0]
        if r >= 2:
            cur += regs[r - 2][1]
        seq.append(cur)
    return seq


SC = ""


def swiglu(u, pk):
    o = {0: [], 1: []}
    for b in range(2):
        G, U = ACC(u, b), ACC(u, 2 + b)
        for r in range(0, 16, 2):
            g0, g1, u0, u1 = G + r, G + r + 1, U + r, U + r + 1
            if pk:
                o[b] += [f"v_pk_mul_f32 {vr(u0, 2)}, {vr(g0, 2)}, {vr(u0, 2)}",
                         f"v_pk_mul_f32 {vr(g0, 2)}, {vr(g0, 2)}, v[10:11] op_sel_hi:[1,0]",
                         f"v_exp_f32 v{g0}, v{g0}", f"v_exp_f32 v{g1}, v{g1}",
                         None,
                         f"v_pk_fma_f32 {vr(g0, 2)}, {vr(g0, 2)}, v[10:11], v[10:11] op_sel:[0,1,1] op_sel_hi:[1,1,1]",
                         f"v_rcp_f32 v{g0}, v{g0}", f"v_rcp_f32 v{g1}, v{g1}",
                         None,
                         f"v_pk_mul_f32 {vr(u0, 2)}, {vr(u0, 2)}, {vr(g0, 2)}",
                         f"v_cvt_pk_bf16_f32 v{G + r // 2}, v{u0}, v{u1}"]
            else:
                o[b] += [f"v_mul_f32 v{u0}, v{g0}, v{u0}", f"v_mul_f32 v{u1}, v{g1}, v{u1}",
                         f"v_mul_f32 v{g0}, v10, v{g0}", f"v_mul_f32 v{g1}, v10, v{g1}",
                         f"v_exp_f32 v{g0}, v{g0}", f"v_exp_f32 v{g1}, v{g1}",
                         f"v_fma_f32 v{g0}, v{g0}, v11, v11", f"v_fma_f32 v{g1}, v{g1}, v11, v11",
                         f"v_rcp_f32 v{g0}, v{g0}", f"v_rcp_f32 v{g1}, v{g1}",
                         f"v_mul_f32 v{u0}, v{u0}, v{g0}", f"v_mul_f32 v{u1}, v{u1}, v{g1}",
                         f"v_cvt_pk_bf16_f32 v{G + r // 2}, v{u0}, v{u1}"]
            if r in (6, 14):
                s = r >> 3
                o[b].append(f"buffer_store_dwordx4 {vr(G + 4 * s)}, v0, s[16:19], s{29 + 2 * u + b} offen offset:{s * 2048}{SC}")
    if pk:
        res = []
        a = [x for x in o[0] if x]
        b = [x for x in o[1] if x]
        for x, y in zip(a, b):
            res += [x, y]
        return res
    return o[0] + o[1]


def start_stream(p, sl, mf, cs):
    for n in range(TRD):
        p(tr_reads(n))
    for r in range(6):
        p(cs[r])
    for ks in range(27):
        items = [x for r in range(4 * ks + 6, 4 * ks + 10) if r < len(cs) for x in cs[r]]
        spread(sl, items, 4 * ks, 4 * ks + 3)
    p.wait([ar(FR(0)), ar(FR(1))])


def gen_p1(cfg):
    p = Prog()
    st = Stamps(cfg.get("stamps"), 0)
    pk = cfg.get("pk", False)
    global SC, PLAIN
    SC = cfg.get("sc1", "")
    PLAIN = cfg.get("plain", 0)
    p(st.mark())
    p("""
    s_cmp_ge_u32 s2, 256
    s_cbranch_scc1 P1_END
    s_load_dwordx2 s[4:5], s[0:1], 0
    s_load_dwordx2 s[12:13], s[0:1], 8
    s_load_dwordx4 s[40:43], s[0:1], 32
    s_load_dwordx2 s[16:17], s[0:1], 72
    s_load_dwordx2 s[44:45], s[0:1], 48
    s_load_dwordx2 s[46:47], s[0:1], 16
    v_lshrrev_b32 v1, 6, v0
    v_and_b32 v13, 63, v0
    v_readfirstlane_b32 s20, v1
    s_and_b32 s35, s2, 7
    s_lshr_b32 s36, s2, 3
    """)
    if cfg.get("map", 4) == 2:
        p("""
        s_and_b32 s21, s35, 1
        s_lshl_b32 s21, s21, 3
        s_and_b32 s37, s36, 7
        s_add_u32 s21, s21, s37
        s_lshr_b32 s22, s35, 1
        s_lshl_b32 s22, s22, 2
        s_lshr_b32 s37, s36, 3
        s_add_u32 s22, s22, s37
        """)
    else:
        p("""
        s_and_b32 s21, s35, 3
        s_lshl_b32 s21, s21, 2
        s_and_b32 s37, s36, 3
        s_add_u32 s21, s21, s37
        s_lshr_b32 s22, s35, 2
        s_lshr_b32 s37, s36, 2
        s_lshl_b32 s37, s37, 1
        s_add_u32 s22, s22, s37
        """)
    p(srd(4, X_BYTES))
    p(f"""
    v_lshrrev_b32 v14, 3, v13
    v_lshrrev_b32 v15, 4, v13
    v_and_b32 v9, 7, v13
    v_xor_b32 v10, v9, v15
    v_lshlrev_b32 v10, 4, v10
    v_mul_u32_u24 v11, 896, v14
    v_add_u32 v128, v10, v11
    v_xor_b32 v129, 64, v128
    v_add_u32 v130, 14336, v128
    v_add_u32 v129, 7168, v129
    v_add_u32 v131, 14336, v129
    s_lshl_b32 s48, s21, 2
    s_add_u32 s48, s48, s20
    s_mul_i32 s35, s48, {32 * 896}
    s_mul_i32 s28, s20, 28672
    s_add_u32 s28, s28, 49152
    s_lshl_b32 s23, s20, 10
    """)
    for line in range(7):
        for b in range(4):
            p(f"s_add_u32 m0, s28, {(line * 4 + b) * 1024 - line * 128}")
            p(f"buffer_load_dwordx4 v{128 + b}, s[4:7], s35 offen offset:{line * 128} lds", tok=f"x{line}")
    p(f"""
    v_and_b32 v10, 1, v15
    v_lshlrev_b32 v10, 2, v10
    v_xor_b32 v10, v9, v10
    v_lshlrev_b32 v10, 4, v10
    v_mul_u32_u24 v8, 2688, v14
    v_add_u32 v8, v8, v10
    s_and_b32 s36, s20, 1
    s_lshr_b32 s37, s20, 1
    """)
    p(srd(12, WQKV_BYTES) + srd(16, WS_SIZE))
    common2 = f"""
    v_and_b32 v140, 31, v13
    v_lshrrev_b32 v141, 5, v13
    v_lshlrev_b32 v0, 4, v13
    v_bfe_u32 v142, v13, 2, 2
    v_lshl_add_u32 v143, v141, 3, v142
    v_lshlrev_b32 v143, 7, v143
    v_bfe_u32 v144, v13, 4, 1
    v_bfe_u32 v145, v13, 1, 1
    v_lshl_add_u32 v144, v144, 1, v145
    v_lshrrev_b32 v142, 1, v142
    v_lshlrev_b32 v142, 2, v142
    v_xor_b32 v144, v144, v142
    v_lshl_add_u32 v143, v144, 4, v143
    v_and_b32 v144, 1, v13
    v_lshl_add_u32 v1, v144, 3, v143
    v_xor_b32 v2, 64, v1
    v_add_u32 v3, 0x10000, v1
    v_add_u32 v4, 0x10000, v2
    v_add_u32 v5, 0x20000, v1
    v_add_u32 v6, 0x20000, v2
    v_bfe_u32 v142, v13, 1, 3
    v_xor_b32 v142, v142, v141
    v_lshlrev_b32 v142, 4, v142
    v_lshl_add_u32 v142, v140, 7, v142
    v_add_u32 v132, s28, v142
    v_xor_b32 v133, 32, v132
    v_xor_b32 v134, 64, v132
    v_xor_b32 v135, 0x60, v132
    v_mov_b32 v136, 0
    v_mov_b32 v137, 0
    v_mov_b32 v138, 0
    v_mov_b32 v139, 0
    s_movk_i32 s25, 0x3f80
    s_mov_b32 s26, 0x3f800000
    s_mov_b32 s27, 0x3f803f80
    """

    def stats():
        def dots(line):
            for r in range(16):
                x = 16 + 16 * line + r
                p(f"v_dot2c_f32_bf16 v{136 + (r & 1)}, s27, v{x}\nv_dot2c_f32_bf16 v{138 + (r & 1)}, v{x}, v{x}")
        for line in range(7):
            p.wait([f"x{line}"])
            for c in range(4):
                p(f"ds_read_b128 {vr(X(4 * line + c))}, v{132 + c} offset:{line * 4096}")
            if line:
                dots(line - 1)
        p(st.mark())
        dots(6)
        p(f"""
        v_add_f32 v136, v136, v137
        v_add_f32 v138, v138, v139
        v_mov_b32 v137, v136
        v_mov_b32 v139, v138
        v_permlane32_swap_b32 v136, v137
        v_permlane32_swap_b32 v138, v139
        v_add_f32 v136, v136, v137
        v_add_f32 v138, v138, v139
        v_mul_f32 v9, {f32(-1.0 / 448)}, v136
        v_mul_f32 v138, {f32(1.0 / 448)}, v138
        v_fma_f32 v138, -v9, v9, v138
        v_max_f32 v138, 0, v138
        v_add_f32 v11, {f32(1e-5)}, v138
        v_rsq_f32 v12, v11
        """)

    def first_slabs(info, lo, hi):
        for j in range(lo, hi):
            d = dma(j, info)
            p(d[0] + d[1] + d[2])

    def run(sl, mf):
        for n in range(len(sl)):
            p(mf(n))
            p(sl[n])

    p("s_cmp_ge_u32 s22, 14\ns_cbranch_scc1 P1_LIGHT")
    p(f"""
    v_mul_u32_u24 v7, 3584, v14
    v_add_u32 v7, v7, v10
    s_cmp_eq_u32 s37, 0
    s_cselect_b32 s8, s40, s42
    s_cselect_b32 s9, s41, s43
    s_mul_i32 s24, s36, 28672
    s_lshl_b32 s38, s22, 8
    s_add_u32 s24, s24, s38
    s_mul_i32 s49, s20, {8 * 2688}
    s_lshl_b32 s38, s22, 7
    s_add_u32 s49, s49, s38
    """)
    p(srd(8, WG_BYTES))

    def hinfo(j):
        if j < 56:
            step = [f"s_add_u32 s24, s24, {16 * 3584}"]
            if j == 27:
                step = [f"s_sub_u32 s24, s24, {27 * 16 * 3584 - 128}"]
            if j == 55:
                step = ["s_mov_b32 s24, s49"]
            return 7, 8, step
        return 8, 12, [f"s_add_u32 s24, s24, {32 * 2688}"]

    first_slabs(hinfo, 0, 12)
    p(common2)
    p(f"""
    s_lshr_b32 s38, s48, 1
    s_mul_i32 s29, s38, {112 * 2048}
    s_lshl_b32 s38, s36, 10
    s_add_u32 s29, s29, s38
    s_lshl_b32 s38, s22, 14
    s_add_u32 s29, s29, s38
    s_add_u32 s29, s29, {WS_H}
    s_add_u32 s30, s29, 4096
    s_add_u32 s31, s29, 8192
    s_add_u32 s32, s29, 12288
    s_cmp_lt_u32 s22, 7
    s_cselect_b32 s34, 17, 18
    s_cselect_b32 s38, 0, 7
    s_cselect_b32 s33, {WS_Q}, {WS_KV}
    s_cselect_b32 s50, {f32(28 ** -0.5 * LOG2E)}, 1.0
    s_sub_u32 s38, s22, s38
    s_lshl_b32 s38, s38, 4
    s_sub_u32 s39, s34, 6
    s_lshl_b32 s39, s48, s39
    s_add_u32 s33, s33, s39
    v_add_u32 v142, s38, v141
    v_lshlrev_b32 v143, 3, v140
    v_lshlrev_b32 v144, 4, v140
    v_add_u32 v144, 0x100, v144
    """)
    for k in range(8):
        p(f"""
        v_add_u32 v145, {2 * k}, v142
        v_mul_u32_u24 v146, 147, v145
        v_lshrrev_b32 v146, 10, v146
        v_mad_i32_i24 v145, v146, -7, v145
        v_cmp_eq_u32 vcc, 6, v145
        v_lshrrev_b32 v147, 1, v145
        v_lshl_add_u32 v147, v147, 9, v144
        v_and_b32 v145, 1, v145
        v_lshl_add_u32 v147, v145, 3, v147
        v_cndmask_b32 v147, v147, v143, vcc
        v_lshl_add_u32 v147, v146, s34, v147
        v_accvgpr_write_b32 a{32 + k}, v147
        """)
    p(st.mark())
    stats()
    p(f"v_mul_f32 v10, {f32(-LOG2E)}, v12\nv_mul_f32 v12, s50, v12")
    p.wait([f"w{j}" for j in range(4)])
    p("s_barrier")
    first_slabs(hinfo, 12, 16)
    sl = base_slots(70, hinfo)
    start_stream(p, sl, None, centre_stream(False))
    spread(sl, swiglu(0, pk), 114, 222)
    spread(sl, swiglu(1, pk) + [f"v_accvgpr_read_b32 v{160 + k}, a{32 + k}" for k in range(8)], 226, 277)

    def hm(n):
        j, i = n >> 2, n & 3
        if j < 56:
            u, ks = divmod(j, 28)
            a = vr(ACC(u, i), 16)
            return mfma(a, ar(FR(n)), vr(X(ks)), "0" if ks == 0 else a)
        ks = 2 * (j - 56) + (i >> 1)
        a = vr(ACC(0, i & 1), 16)
        return mfma(a, ar(FR(n)), vr(X(ks)), "0" if ks == 0 else a)

    p(st.mark())
    sl[111] += [Ins(x) for x in st.mark()]
    sl[223] += [Ins(x) for x in st.mark()]
    run(sl, hm)
    p(st.mark())
    for b in range(2):
        for rq in range(4):
            a = ACC(0, b) + 4 * rq
            p(f"""
            v_pk_mul_f32 {vr(a, 2)}, {vr(a, 2)}, v[12:13] op_sel_hi:[1,0]
            v_pk_mul_f32 {vr(a + 2, 2)}, {vr(a + 2, 2)}, v[12:13] op_sel_hi:[1,0]
            v_cvt_pk_bf16_f32 v{a}, v{a}, v{a + 1}
            v_cvt_pk_bf16_f32 v{a + 1}, v{a + 2}, v{a + 3}
            buffer_store_dwordx2 {vr(a, 2)}, v{160 + 4 * b + rq}, s[16:19], s33 offen{SC}
            """)
    p(st.mark())
    p(st.dump("s[16:19]", "s20", "s2"))
    p("P1_END:\ns_endpgm")
    st.n = 1
    p("P1_LIGHT:")
    p(f"""
    s_sub_u32 s38, s22, 14
    s_mul_i32 s51, s38, 192
    s_mul_i32 s24, s36, {8 * 2688}
    s_lshl_b32 s39, s37, 7
    s_add_u32 s24, s24, s39
    s_lshl_b32 s39, s51, 1
    s_add_u32 s24, s24, s39
    s_add_u32 s24, s24, 1792
    """)

    def linfo(j):
        step = [f"s_add_u32 s24, s24, {16 * 2688}"]
        if j == 27:
            step = [f"s_sub_u32 s24, s24, {27 * 16 * 2688 - 256}"]
        return 8, 12, step

    first_slabs(linfo, 0, 12)
    p(common2)
    p(f"""
    v_mul_u32_u24 v7, 896, v14
    v_add_u32 v7, v7, v10
    s_lshl_b32 s38, s38, 4
    s_add_u32 s38, s38, s21
    s_lshl_b32 s38, s38, 2
    s_add_u32 s38, s38, s20
    s_lshl_b32 s52, s38, 14
    s_add_u32 s52, s52, {WS_WDT}
    s_mul_i32 s39, s38, 4682
    s_lshr_b32 s39, s39, 16
    s_mul_i32 s53, s39, 14
    s_sub_u32 s53, s38, s53
    s_mul_i32 s53, s53, {128 * 896}
    s_lshl_b32 s39, s39, 7
    s_add_u32 s53, s53, s39
    s_sub_u32 s39, s38, 98
    s_and_b32 s54, s39, 3
    s_mul_i32 s54, s54, {4 * 28 * 896}
    s_lshr_b32 s39, s39, 2
    s_lshl_b32 s39, s39, 7
    s_add_u32 s54, s54, s39
    s_cmp_lt_u32 s38, 98
    s_cselect_b32 s53, s53, s54
    s_cselect_b32 s54, 1, 0
    s_cselect_b32 s8, s44, s46
    s_cselect_b32 s9, s45, s47
    s_lshl_b32 s10, s54, 1
    s_lshl_b32 s10, {WO_BYTES}, s10
    s_lshl_b32 s54, 3584, s54
    s_mov_b32 s11, 0x00020000
    s_lshl_b32 s55, s20, 14
    s_add_u32 s55, s55, 0x10000
    s_lshl_b32 s33, s48, 12
    s_add_u32 s33, s33, {WS_KV + 2048}
    v_add_u32 v142, s51, v140
    v_lshlrev_b32 v143, 9, v141
    v_bfrev_b32 v144, 1
    """)
    for k in range(8):
        p(f"""
        v_add_u32 v145, {32 * k}, v142
        v_lshrrev_b32 v146, 2, v145
        v_mul_u32_u24 v146, 147, v146
        v_lshrrev_b32 v146, 10, v146
        v_mul_u32_u24 v147, 28, v146
        v_sub_u32 v145, v145, v147
        v_cmp_eq_u32 vcc, 27, v145
        v_lshl_add_u32 v147, v145, 4, v143
        v_lshl_add_u32 v147, v146, 18, v147
        v_accvgpr_write_b32 a{32 + k}, v147
        v_cndmask_b32 v147, v144, v147, vcc
        v_accvgpr_write_b32 a{40 + k}, v147
        """)
    for r in range(4):
        p(f"v_accvgpr_write_b32 a{48 + r}, s27")
    p(f"v_lshlrev_b32 v14, 9, v141\nv_sub_u32 v14, v1, v14\nv_add_u32 v14, s55, v14\nv_xor_b32 v15, 64, v14")
    p(st.mark())
    stats()
    p("v_mov_b32 v10, v12\nv_mul_f32 v11, v9, v12")
    p.wait([f"w{j}" for j in range(4)])
    p("s_barrier")
    first_slabs(linfo, 12, 16)
    sl = base_slots(56, linfo)
    start_stream(p, sl, None, centre_stream(True))

    def vepi(u):
        o = []
        for i in range(4):
            a = ACC(u, i)
            o += [f"v_accvgpr_read_b32 v12, a{32 + 4 * u + i}", f"v_accvgpr_read_b32 v13, a{40 + 4 * u + i}"]
            for r in range(8):
                o.append(f"v_cvt_pk_bf16_f32 v{a + r}, v{a + 2 * r}, v{a + 2 * r + 1}")
            for s in range(2):
                o.append(f"buffer_store_dwordx4 {vr(a + 4 * s)}, v12, s[16:19], s33 offen offset:{1024 * s}{SC}")
                o.append(f"buffer_store_dwordx4 a[48:51], v13, s[16:19], s33 offen offset:{1024 * s + 16}{SC}")
        return o

    spread(sl, vepi(0), 114, 140)
    for t in range(16):
        n, half = t >> 1, t & 1
        k = 4 * 40 + 2 * t
        sl[k].insert(0, Ins(f"s_add_u32 m0, s55, {t * 1024}"))
        sl[k].append(Ins(f"buffer_load_dwordx4 v7, s[8:11], s53 offen lds", tok="tp"))
        sl[k].append(Ins(f"s_add_u32 s53, s53, {'s54' if t % 4 == 3 else 7168}"))

    def lm(n):
        j, i = n >> 2, n & 3
        u, ks = divmod(j, 28)
        a = vr(ACC(u, i), 16)
        return mfma(a, vr(X(ks)), ar(FR(n)), "0" if ks == 0 else a)

    p(st.mark())
    sl[111] += [Ins(x) for x in st.mark()]
    run(sl, lm)
    p(st.mark())
    p.wait(["tp"])
    for n in range(8):
        for b in range(2):
            d = 16 + 8 * n + 4 * b
            p(f"ds_read_b64_tr_b16 {vr(d, 2)}, v{14 + b} offset:{n * 2048}")
            p(f"ds_read_b64_tr_b16 {vr(d + 2, 2)}, v{14 + b} offset:{n * 2048 + 1024}")
    p(vepi(1))
    for n in range(8):
        for b in range(2):
            d = 16 + 8 * n + 4 * b
            p(f"buffer_store_dwordx4 {vr(d)}, v0, s[16:19], s52 offen offset:{(n & 1) * 2048 + b * 1024}{SC}")
        if n & 1:
            p("s_add_u32 s52, s52, 4096")
    p(st.mark())
    p(st.dump("s[16:19]", "s20", "s2"))
    p("s_endpgm")
    return dict(name="p1_kernel", code=p.finalize(), grid=256, lds=163840, vgpr=256, agpr=64)
```

```python
from common import *
from p3 import tile_map

S = lambda n: 16 + 16 * (n & 1)
P = 48
Q = lambda j, ks: 56 + 8 * j + 4 * ks
KV = lambda slot, part: 88 + 16 * slot + 4 * part
O = lambda j: ar(16 * j, 16)
D = lambda j: ar(64 + 16 * j, 16)
DR = lambda s, part: 128 + 16 * s + 4 * part
DSRD = {0: 12, 1: 16, 2: 20, 3: 24}


def kv_load(slot, part, t):
    va = (5 + t) if part == 1 else (1 + t)
    off = {0: 768, 1: 0, 2: 2048, 3: 3072}[part]
    return Ins(f"buffer_load_dwordx4 {vr(KV(slot, part))}, v{va}, s[8:11], 0 offen offset:{off}")


def d_load(s, part, kk):
    return Ins(f"buffer_load_dwordx4 {ar(DR(s, part))}, v{1 + (kk >> 1)}, {sr(DSRD[part], 4)}, 0 offen offset:{(kk & 1) * 2048}")


def gen_p2(cfg):
    p = Prog()
    st = Stamps(cfg.get("stamps"), 1)
    SC = cfg.get("sc2", "")
    p(st.mark())
    p("""
    s_cmp_ge_u32 s2, 256
    s_cbranch_scc1 P2_END
    s_load_dwordx2 s[4:5], s[0:1], 72
    v_lshrrev_b32 v1, 6, v0
    v_and_b32 v13, 63, v0
    v_readfirstlane_b32 s28, v1
    v_lshlrev_b32 v1, 4, v13
    v_and_b32 v14, 31, v13
    v_lshlrev_b32 v5, 3, v14
    v_add_u32 v15, 0x100, v1
    v_cmp_gt_u32 vcc, 32, v13
    s_and_b32 s29, s2, 7
    s_lshl_b32 s29, s29, 1
    s_bfe_u32 s36, s2, 0x10003
    s_add_u32 s29, s29, s36
    s_lshr_b32 s30, s2, 4
    v_cndmask_b32 v5, v5, v15, vcc
    s_mov_b64 s[44:45], vcc
    """)
    for t in range(1, 4):
        p(f"v_add_u32 v{1 + t}, {4096 * t}, v1\nv_add_u32 v{5 + t}, {4096 * t}, v5")
    tile_map(p, "s31", "s32", "s33", "s36")
    p(srd(4, WS_SIZE))
    p(f"""
    s_lshl_b32 s36, s29, 17
    s_lshl_b32 s37, s30, 13
    s_add_u32 s36, s36, s37
    """)
    for j in range(4):
        p(f"s_xor_b32 s37, s28, {j}\ns_lshl_b32 s37, s37, 11\ns_add_u32 s{46 + j}, s36, s37")
    p(f"""
    s_lshl_b32 s36, s29, 18
    s_add_u32 s50, s36, {WS_KV}
    s_lshl_b32 s37, s28, 16
    s_add_u32 s36, s50, s37
    s_add_u32 s8, s4, s36
    s_addc_u32 s9, s5, 0
    """)
    p(srd(8, 65536))
    ql = lambda j: [f"buffer_load_dwordx4 {vr(Q(j, 0))}, v1, s[4:7], s{46 + j} offen offset:768",
                    f"buffer_load_dwordx4 {vr(Q(j, 1))}, v5, s[4:7], s{46 + j} offen"]
    p(ql(0))
    p([kv_load(0, 0, 0), kv_load(0, 1, 0)])
    p(ql(1))
    p([kv_load(0, 2, 0), kv_load(0, 3, 0)])
    p(ql(2) + ql(3))
    p(f"""
    s_cmp_lt_u32 s33, 28
    s_cselect_b32 s34, 14336, 0
    s_lshl_b32 s14, s34, 2
    s_cselect_b32 s42, {WS_SIZE}, 0
    s_mul_i32 s36, s32, {112 * 2048}
    s_mul_i32 s37, s28, {28 * 2048}
    s_add_u32 s36, s36, s37
    s_add_u32 s36, s36, {WS_WDT}
    s_and_b32 s38, s28, 1
    s_lshl_b32 s38, s38, 10
    s_add_u32 s36, s36, s38
    s_add_u32 s12, s4, s36
    s_addc_u32 s13, s5, 0
    s_xor_b32 s36, s36, 0x400
    s_add_u32 s16, s4, s36
    s_addc_u32 s17, s5, 0
    s_mul_i32 s36, s31, {112 * 2048}
    s_add_u32 s36, s36, s37
    s_add_u32 s36, s36, {WS_H}
    s_lshr_b32 s38, s28, 1
    s_lshl_b32 s38, s38, 10
    s_add_u32 s36, s36, s38
    s_add_u32 s20, s4, s36
    s_addc_u32 s21, s5, 0
    s_xor_b32 s36, s36, 0x400
    s_add_u32 s24, s4, s36
    s_addc_u32 s25, s5, 0
    s_mov_b32 s18, s14
    s_mov_b32 s22, s14
    s_mov_b32 s26, s14
    s_mov_b32 s15, 0x00020000
    s_mov_b32 s19, 0x00020000
    s_mov_b32 s23, 0x00020000
    s_mov_b32 s27, 0x00020000
    s_mov_b32 s40, s4
    s_mov_b32 s41, s5
    s_mov_b32 s43, 0x00020000
    """)
    dl = lambda s: [d_load(s, part, s) for part in (0, 2, 1, 3)]
    p(dl(0) + dl(1) + dl(2))
    p([kv_load(1, 0, 1), kv_load(1, 1, 1)] + dl(3) + [kv_load(1, 2, 1), kv_load(1, 3, 1)] + dl(4))
    p([kv_load(2, 0, 2), kv_load(2, 1, 2)] + dl(5) + [kv_load(2, 2, 2), kv_load(2, 3, 2)])
    p("s_add_u32 s8, s8, 12288\ns_addc_u32 s9, s9, 0\ns_sub_u32 s10, s10, 12288")
    p("s_cmp_lt_u32 s33, 28\ns_cselect_b32 s36, 12288, 0")
    for s in DSRD.values():
        p(f"s_add_u32 s{s}, s{s}, 12288\ns_addc_u32 s{s + 1}, s{s + 1}, 0\ns_sub_u32 s{s + 2}, s{s + 2}, s36")
    for r in range(128):
        p(f"v_accvgpr_write_b32 a{r}, 0")
    for r in [S(1) + 14, S(1) + 15, P + 4, P + 5, P + 6] + [KV(3, 3) + i for i in range(4)]:
        p(f"v_mov_b32 v{r}, 0")
    p("s_mov_b32 s35, 4")
    p(st.mark())
    zq = lambda j: [f"v_cndmask_b32 v{Q(j, 1) + i}, 0, v{Q(j, 1) + i}, s[44:45]" for i in (2, 3)]
    p(zq(0))
    p(mfma(vr(S(0), 16), vr(KV(0, 0)), vr(Q(0, 0)), "0"))
    p(mfma(vr(S(0), 16), vr(KV(0, 1)), vr(Q(0, 1)), vr(S(0), 16)))
    p(zq(1) + zq(2) + zq(3))
    p(st.mark())
    p("P2_LOOP:")
    salu = []
    for s in DSRD.values():
        salu.append([f"s_add_u32 s{s}, s{s}, 14336", f"s_addc_u32 s{s + 1}, s{s + 1}, 0"])
        salu.append([f"s_sub_u32 s{s + 2}, s{s + 2}, s34"])
    for j in range(16):
        s0, s1 = S(j), S(j + 1)
        e = lambda i: f"v_exp_f32 v{s0 + i}, v{s0 + i}"
        c = lambda i: f"v_cvt_pk_bf16_f32 v{P + i}, v{s0 + 2 * i}, v{s0 + 2 * i + 1}"
        c7 = f"v_cvt_pk_bf16_f32 v{P + 7}, v{s1 + 14}, v{s1 + 15}"
        grp = [[e(0), c7, e(1), e(2)], [c(0), e(3), e(4), c(1)], [e(5), e(6), c(2), e(7)],
               [e(8), c(3), e(9), e(10)], [c(4), e(11), e(12), c(5)], [e(13), e(14), c(6), e(15)]]
        tt, qb = j >> 2, j & 3
        pt, pq = ((j - 1) >> 2) & 3, (j - 1) & 3
        nt, nq = ((j + 1) >> 2) & 3, (j + 1) & 3
        mm = [mfma(O(pq), vr(KV(pt, 3)), vr(P + 4), O(pq)),
              mfma(vr(s1, 16), vr(KV(nt, 0)), vr(Q(nq, 0)), "0"),
              mfma(vr(s1, 16), vr(KV(nt, 1)), vr(Q(nq, 1)), vr(s1, 16)),
              mfma(O(qb), vr(KV(tt, 2)), vr(P), O(qb)), None, None]
        after = [[] for _ in range(6)]
        need = []
        if qb == 3:
            need += [vr(KV(nt, 0)), vr(KV(nt, 1))]
        if qb == 0:
            need += [vr(KV(tt, 2)), vr(KV(tt, 3))]
        if j < 14:
            k, t = j >> 1, j & 1
            mm[4] = mfma(D(2 * t), ar(DR(k, 0)), ar(DR(k, 2 + t)), D(2 * t))
            mm[5] = mfma(D(2 * t + 1), ar(DR(k, 1)), ar(DR(k, 2 + t)), D(2 * t + 1))
            if t == 0:
                need += [ar(DR(k, i)) for i in range(4)]
            after[2].append(d_load((k - 1) % 7, t, k))
            after[3].append(d_load((k - 1) % 7, 2 + t, k))
        if need:
            after[0].append(W(need))
        after[1].append(kv_load((tt + 3) & 3, qb, tt))
        if j == 13:
            after[4] += salu[0]; after[5] += salu[4]
        if j == 14:
            after[0] += salu[1]; after[2] += salu[2]; after[3] += salu[6]; after[4] += salu[3] + salu[5] + salu[7]
        if j == 15:
            after[2] += ["s_add_u32 s8, s8, 16384", "s_addc_u32 s9, s9, 0"]
            after[3] += ["s_sub_u32 s10, s10, 16384", "s_sub_u32 s35, s35, 1"]
            after[4] += ["s_cmp_lg_u32 s35, 0"]
        for g in range(6):
            p(grp[g])
            if mm[g] is not None:
                p(mm[g])
            p(after[g])
    p("s_cbranch_scc1 P2_LOOP")
    p(st.mark())
    for j in range(1, 4):
        p(f"""
        s_xor_b32 s36, s28, {j}
        s_mul_i32 s36, s36, 12288
        s_add_u32 s36, s36, {(j - 1) * 4096}
        v_add_u32 v{8 + j}, s36, v1
        """)
    p(f"v_cvt_pk_bf16_f32 v{P + 7}, v{S(1) + 14}, v{S(1) + 15}")
    p("s_mul_i32 s36, s28, 12288\nv_add_u32 v12, s36, v1")
    p(mfma(O(3), vr(KV(3, 3)), vr(P + 4), O(3)))
    for base, acc in ((0, 64), (49152, 0)):
        for j in range(1, 4):
            for q in range(4):
                p(f"ds_write_b128 v{8 + j}, {ar(acc + 16 * j + 4 * q)} offset:{base + q * 1024}", tok="xw")
    OA, DA, RD = 160, 176, 88
    for r in range(16):
        p(f"v_accvgpr_read_b32 v{OA + r}, a{r}\nv_accvgpr_read_b32 v{DA + r}, a{64 + r}")
    p.wait(["xw"])
    p("s_barrier")
    for base, rd in ((49152, 88), (0, 192)):
        for j in range(3):
            for q in range(4):
                p(f"ds_read_b128 {vr(rd + 16 * j + 4 * q)}, v12 offset:{base + j * 4096 + q * 1024}")
    p(f"""
    s_lshl_b32 s36, s30, 1
    s_lshr_b32 s37, s28, 1
    s_add_u32 s36, s36, s37
    s_lshl_b32 s36, s36, 16
    s_lshl_b32 s37, s29, 12
    s_add_u32 s36, s36, s37
    s_and_b32 s37, s28, 1
    s_lshl_b32 s37, s37, 10
    s_add_u32 s36, s36, s37
    s_add_u32 s51, s36, {WS_OF}
    s_lshl_b32 s36, s2, 13
    s_lshl_b32 s37, s28, 11
    s_add_u32 s36, s36, s37
    s_add_u32 s52, s36, {WS_G}
    s_mov_b32 s53, {f32(2.0 ** -60)}
    v_mov_b32 v11, {f32(2.0 ** 60)}
    """)
    for j in range(3):
        for r in range(0, 16, 2):
            p(f"v_pk_add_f32 {vr(OA + r, 2)}, {vr(OA + r, 2)}, {vr(88 + 16 * j + r, 2)}")
    p(f"""
    v_mov_b32 v9, v{OA + 12}
    v_mov_b32 v10, v{OA + 12}
    v_permlane32_swap_b32 v9, v10
    v_med3_f32 v9, v10, s53, v11
    v_cmp_neq_f32 vcc, v9, v10
    s_cbranch_vccnz P2_FB
    P2_NORM:
    v_rcp_f32 v10, v10
    """)
    for j in range(3):
        for r in range(0, 16, 2):
            p(f"v_pk_add_f32 {vr(DA + r, 2)}, {vr(DA + r, 2)}, {vr(192 + 16 * j + r, 2)}")
    for r in range(0, 16, 2):
        p(f"v_pk_mul_f32 {vr(OA + r, 2)}, {vr(OA + r, 2)}, v[10:11] op_sel_hi:[1,0]")
    for r in range(8):
        p(f"v_cvt_pk_bf16_f32 v{16 + r}, v{OA + 2 * r}, v{OA + 2 * r + 1}")
    p(f"""
    v_cndmask_b32 v22, 0, v22, s[44:45]
    v_cndmask_b32 v23, 0, v23, s[44:45]
    buffer_store_dwordx4 v[16:19], v1, s[4:7], s51 offen{SC}
    buffer_store_dwordx4 v[20:23], v1, s[4:7], s51 offen offset:2048{SC}
    s_mov_b32 s36, {f32(-LOG2E)}
    """)
    p(silu_ops([DA + r for r in range(16)], [192 + r for r in range(16)], "s36"))
    for r in range(8):
        p(f"v_cvt_pk_bf16_f32 v{24 + r}, v{DA + 2 * r}, v{DA + 2 * r + 1}")
    p(f"""
    buffer_store_dwordx4 v[24:27], v1, s[40:43], s52 offen{SC}
    buffer_store_dwordx4 v[28:31], v1, s[40:43], s52 offen offset:1024{SC}
    """)
    p(st.mark())
    p(st.dump("s[4:7]", "s28", "s2"))
    p("P2_END:\ns_endpgm")
    s0 = S(0)
    kq = [f"buffer_load_dwordx4 {vr(KV(0, 0))}, v1, s[4:7], s36 offen offset:768",
          f"buffer_load_dwordx4 {vr(KV(0, 1))}, v5, s[4:7], s36 offen"]
    qk = [mfma(vr(s0, 16), vr(KV(0, 0)), vr(Q(0, 0)), "0"), mfma(vr(s0, 16), vr(KV(0, 1)), vr(Q(0, 1)), vr(s0, 16))]
    p("P2_FB:\ns_mov_b32 s36, s50\ns_mov_b32 s35, 64\nv_mov_b32 v9, 0xff800000\nP2_FB1:")
    p(kq + qk)
    for r in range(0, 16, 2):
        p(f"v_max3_f32 v9, v9, v{s0 + r}, v{s0 + r + 1}")
    p("""
    s_add_u32 s36, s36, 4096
    s_sub_u32 s35, s35, 1
    s_cmp_lg_u32 s35, 0
    s_cbranch_scc1 P2_FB1
    v_mov_b32 v10, v9
    v_permlane32_swap_b32 v9, v10
    v_max_f32 v9, v9, v10
    s_mov_b32 s36, s50
    s_mov_b32 s35, 64
    """)
    for r in range(16):
        p(f"v_mov_b32 v{OA + r}, 0")
    p("P2_FB2:")
    p(kq)
    p(f"buffer_load_dwordx4 {vr(KV(0, 2))}, v1, s[4:7], s36 offen offset:2048")
    p(f"buffer_load_dwordx4 {vr(KV(0, 3))}, v1, s[4:7], s36 offen offset:3072")
    p(qk)
    for r in range(16):
        p(f"v_sub_f32 v{s0 + r}, v{s0 + r}, v9")
    for r in range(16):
        p(f"v_exp_f32 v{s0 + r}, v{s0 + r}")
    for r in range(8):
        p(f"v_cvt_pk_bf16_f32 v{P + r}, v{s0 + 2 * r}, v{s0 + 2 * r + 1}")
    p(mfma(vr(OA, 16), vr(KV(0, 2)), vr(P), vr(OA, 16)))
    p(mfma(vr(OA, 16), vr(KV(0, 3)), vr(P + 4), vr(OA, 16)))
    p(f"""
    s_add_u32 s36, s36, 4096
    s_sub_u32 s35, s35, 1
    s_cmp_lg_u32 s35, 0
    s_cbranch_scc1 P2_FB2
    v_mov_b32 v9, v{OA + 12}
    v_mov_b32 v10, v{OA + 12}
    v_permlane32_swap_b32 v9, v10
    s_branch P2_NORM
    """)
    return dict(name="p2_kernel", code=p.finalize(), grid=256, lds=98304, vgpr=256, agpr=256)
```

```python
import sys, json, os
sys.path.insert(0, os.path.dirname(os.path.abspath(__file__)))
from p1 import gen_p1
from p2 import gen_p2
from p3 import gen_p3

REF = "recurrent_scan__mha_block__swiglu_ffn__prompt.s.ref"


def emit(ks):
    head = []
    for l in open(REF).read().split("\n"):
        if l.startswith("; @launch"):
            break
        head.append(l)
    out = head[:]
    for d in ks:
        out.append(f"; @launch kernel={d['name']} grid=({d['grid']},1,1) block=({d.get('block', 256)},1,1) lds={d['lds']}")
    out += ['.amdgcn_target "amdgcn-amd-amdhsa--gfx950"', ".text"]
    seen = set()
    for d in ks:
        K = d["name"]
        if K in seen:
            continue
        seen.add(K)
        out += [f".globl {K}", ".p2align 8", f".type {K},@function", f"{K}:"]
        out += d["code"]
    out.append('.section .rodata,"a"')
    seen = set()
    for d in ks:
        K = d["name"]
        if K in seen:
            continue
        seen.add(K)
        out += [".p2align 6", f".amdhsa_kernel {K}", f"  .amdhsa_next_free_vgpr {d['vgpr'] + d['agpr']}",
                "  .amdhsa_next_free_sgpr 102", f"  .amdhsa_accum_offset {d['vgpr']}",
                "  .amdhsa_group_segment_fixed_size 0", "  .amdhsa_kernarg_size 80", "  .amdhsa_user_sgpr_count 2",
                "  .amdhsa_user_sgpr_kernarg_segment_ptr 1", "  .amdhsa_system_sgpr_workgroup_id_x 1", ".end_amdhsa_kernel"]
    return "\n".join(out) + "\n"


if __name__ == "__main__":
    fn = sys.argv[1]
    cfg = json.loads(sys.argv[2]) if len(sys.argv) > 2 else {}
    G = {"1": gen_p1, "2": gen_p2, "3": gen_p3,
         "n": lambda c: dict(name="nop_kernel", code=["s_endpgm"], grid=1, lds=0, vgpr=4, agpr=0, block=64)}
    made = {}
    ks = []
    for n in cfg.get("only", "123"):
        if n not in made:
            made[n] = G[n](cfg)
        ks.append(made[n])
    open(fn, "w").write(emit(ks))
    for d in ks:
        c = d["code"]
        print(d["name"], "lines", len(c), "nops", sum(1 for x in c if x.startswith("s_nop")), "waits", sum(1 for x in c if x.startswith("s_waitcnt")))
```

```python
import re

TRANS = ("v_exp_", "v_log_", "v_rcp_", "v_rsq_", "v_sqrt_", "v_sin_", "v_cos_")
_rng = re.compile(r"^([vas])\[(\d+):(\d+)\]$")
_one = re.compile(r"^([vas])(\d+)$")


def regs_of(op):
    op = op.strip()
    op = op.lstrip("-").strip("|")
    m = _rng.match(op)
    if m:
        return [f"{m.group(1)}{i}" for i in range(int(m.group(2)), int(m.group(3)) + 1)]
    m = _one.match(op)
    if m:
        return [op]
    if op in ("vcc", "vcc_lo", "vcc_hi"):
        return ["vcc"]
    if op in ("exec", "exec_lo", "exec_hi"):
        return ["exec"]
    if op == "m0":
        return ["m0"]
    return []


class Ins:
    def __init__(self, text, tok=None, need=None):
        self.text = text
        self.tok = tok
        self.need = need or []
        self.dst = []
        self.src = []
        self.srcc = []
        self.passes = 0
        self.target = None
        self.uncond = False
        t = text.split(";")[0].strip()
        if t.endswith(":"):
            self.kind = "label"
            self.name = t[:-1]
            return
        if t.startswith(".") or t == "":
            self.kind = "dir"
            return
        if t == "WAIT":
            self.kind = "pwait"
            return
        sp = t.split(None, 1)
        mn = self.mn = sp[0]
        rest = sp[1] if len(sp) > 1 else ""
        extra = ""
        m = re.search(r"\s(op_sel|neg_lo|neg_hi|quad_perm)", rest)
        if m:
            rest, extra = rest[:m.start()], rest[m.start():]
        ops = [o.strip() for o in rest.split(",")] if rest else []
        mods = ""
        if ops:
            last = ops[-1].split(None, 1)
            ops[-1] = last[0]
            mods = last[1] if len(last) > 1 else ""
        mods += extra
        self.ops = ops
        self.mods = mods
        R = [regs_of(o) for o in ops]
        allr = [r for x in R for r in x]
        if mn.startswith("v_mfma"):
            self.kind = "mfma"
            self.dst = R[0]
            self.src = R[1] + R[2]
            self.srcc = R[3]
            self.passes = 8 if "32x32" in mn else 4
        elif mn.startswith("v_"):
            self.kind = "trans" if mn.startswith(TRANS) else ("dot" if mn.startswith("v_dot") else "valu")
            if mn.startswith("v_permlane") and "swap" in mn:
                self.dst = allr
                self.src = allr
            elif mn.startswith("v_cmpx"):
                self.dst = ["exec"] + R[0]
                self.src = [r for x in R[1:] for r in x]
            else:
                self.dst = R[0]
                self.src = [r for x in R[1:] for r in x]
                if mn.startswith(("v_add_co", "v_sub_co", "v_addc_co", "v_subb_co")):
                    self.dst = R[0] + R[1]
                    self.src = [r for x in R[2:] for r in x]
                if mn.startswith(("v_fmac", "v_mac", "v_dot2c", "v_writelane")) or "UNUSED_PRESERVE" in mods:
                    self.src = self.src + R[0]
                if self.kind == "dot":
                    self.srcc = R[0] if mn.startswith("v_dot2c") else R[3]
                    self.srcab = R[1] + R[2]
        elif mn.startswith("ds_"):
            if mn.startswith(("ds_read", "ds_bpermute", "ds_permute", "ds_swizzle")) or "_rtn" in mn:
                self.kind = "dsr"
                self.dst = R[0]
                self.src = [r for x in R[1:] for r in x]
            else:
                self.kind = "dsw"
                self.src = allr
        elif mn.startswith(("buffer_", "global_")):
            words = mods.split()
            if mn in ("buffer_wbl2", "buffer_inv"):
                self.kind = "vst"
            elif "lds" in words or mn.startswith("global_load_lds"):
                self.kind = "dma"
                self.src = allr + ["m0"]
            elif "_load" in mn:
                self.kind = "vld"
                self.dst = R[0]
                self.src = [r for x in R[1:] for r in x]
            elif "atomic" in mn and "sc0" in words:
                self.kind = "vld"
                self.dst = R[0]
                self.src = allr
            else:
                self.kind = "vst"
                self.src = allr
                if mn.endswith(("x3", "x4")):
                    self.wide = R[0] if mn.startswith("buffer_") else R[1]
        elif mn.startswith(("s_load", "s_memtime", "s_memrealtime", "s_buffer_load")):
            self.kind = "smem"
            self.dst = R[0]
            self.src = [r for x in R[1:] for r in x]
        elif mn in ("s_branch",) or mn.startswith("s_cbranch"):
            self.kind = "branch"
            self.target = ops[0]
            self.uncond = mn == "s_branch"
        elif mn == "s_endpgm":
            self.kind = "end"
        elif mn == "s_waitcnt":
            self.kind = "wait"
            self.vm = self.lg = None
            m = re.search(r"vmcnt\((\d+)\)", t)
            if m:
                self.vm = int(m.group(1))
            m = re.search(r"lgkmcnt\((\d+)\)", t)
            if m:
                self.lg = int(m.group(1))
        elif mn == "s_nop":
            self.kind = "nop"
            self.n = int(ops[0]) + 1
        elif mn in ("s_barrier", "s_setprio", "s_sleep"):
            self.kind = "misc"
        elif mn.startswith("s_"):
            self.kind = "salu"
            if mn.startswith("s_cmp") or mn.startswith("s_bitcmp"):
                self.src = allr
            else:
                self.dst = R[0]
                self.src = [r for x in R[1:] for r in x]
                if "saveexec" in mn:
                    self.dst = self.dst + ["exec"]
                    self.src = self.src + ["exec"]
        else:
            raise ValueError("unknown instruction " + text)


CAP = 24


class St:
    def __init__(self):
        self.vm = {}
        self.lg = {}
        self.smem = set()
        self.w = {}
        self.c = {}
        self.ws = {}

    def copy(self):
        s = St()
        s.vm, s.lg, s.smem = dict(self.vm), dict(self.lg), set(self.smem)
        s.w = {k: list(v) for k, v in self.w.items()}
        s.c, s.ws = dict(self.c), dict(self.ws)
        return s

    def key(self):
        return (sorted(self.vm.items()), sorted(self.lg.items()), sorted(self.smem),
                sorted((k, sorted(v)) for k, v in self.w.items()), sorted(self.c.items()), sorted(self.ws.items()))

    def merge(self, o):
        for a, b in ((self.vm, o.vm), (self.lg, o.lg), (self.ws, o.ws)):
            for k, v in b.items():
                a[k] = min(a.get(k, v), v)
        self.smem |= o.smem
        for k, v in o.c.items():
            if k not in self.c or v[0] < self.c[k][0]:
                self.c[k] = v
        for k, v in o.w.items():
            cur = self.w.setdefault(k, [])
            for e in v:
                for i, f in enumerate(cur):
                    if f[0] == e[0] and f[2] == e[2]:
                        cur[i] = (e[0], min(e[1], f[1]), e[2])
                        break
                else:
                    cur.append(e)

    def tick(self, n):
        for k in list(self.w):
            v = [(a, d + n, i) for a, d, i in self.w[k] if d + n < CAP]
            if v:
                self.w[k] = v
            else:
                del self.w[k]
        self.c = {k: (d + n, p) for k, (d, p) in self.c.items() if d + n < CAP}
        self.ws = {k: d + n for k, d in self.ws.items() if d + n < 4}

    def do_wait(self, vm, lg):
        if vm is not None:
            self.vm = {k: a for k, a in self.vm.items() if a < vm}
        if lg is not None:
            self.lg = {k: a for k, a in self.lg.items() if a < lg}
            if lg == 0:
                self.smem = set()


def need_states(s, i):
    need = 0

    def req(r, kinds, n):
        nonlocal need
        for a, d, info in s.w.get(r, []):
            if a in kinds:
                nn = n(info) if callable(n) else n
                need = max(need, nn - d)

    rd12 = lambda info: 12 if info[0] == 8 else 8
    k = i.kind
    VA = ("valu", "trans")
    if k == "mfma":
        for r in i.src:
            req(r, VA, 2); req(r, ("dot",), 3); req(r, ("mfma",), rd12)
        for r in i.srcc:
            req(r, VA, 2); req(r, ("dot",), 3)
            req(r, ("mfma",), lambda info: 0 if (info[0] == i.passes and info[1] == tuple(i.srcc)) else (10 if info[0] == 8 else 6))
        req("exec", VA, 4)
    elif k in ("valu", "trans", "dot"):
        for r in i.src + i.dst:
            req(r, ("mfma",), rd12)
        for r in i.src:
            req(r, ("trans",), 1)
            if r[0] == "s" or r == "vcc" or r == "exec":
                req(r, VA, 2)
            if i.mn.startswith(("v_readlane", "v_readfirstlane")):
                req(r, VA + ("dot",), 1)
            if i.mn.startswith("v_permlane") or "row_" in i.mods or "quad_perm" in i.mods or "dpp" in i.mn:
                req(r, VA + ("dot",), 2)
        if i.mn.startswith(("v_readlane", "v_readfirstlane", "v_writelane", "v_permlane")):
            req("exec", VA, 4)
        if "row_" in i.mods or "quad_perm" in i.mods:
            req("exec", VA, 5)
        for r in set(i.src + i.dst):
            if k == "dot" and r in i.srcc and r not in i.srcab:
                req(r, ("dot",), lambda info: 0 if info == i.mn else 3)
            else:
                req(r, ("dot",), 3)
        for r in i.dst:
            if r in s.c:
                d, p = s.c[r]
                need = max(need, (7 if p == 8 else 3) - d)
            if r in s.ws:
                need = max(need, 2 - s.ws[r])
    elif k in ("dsr", "dsw", "vld", "vst", "dma"):
        for r in i.src + i.dst:
            req(r, ("mfma",), rd12); req(r, ("dot",), 3)
        for r in i.src:
            if r[0] == "s" and k in ("vld", "vst", "dma"):
                req(r, VA, 5)
        if k == "dma":
            req("m0", ("salu",), 1)
        for r in i.dst:
            if r in s.ws:
                need = max(need, 1 - s.ws[r])
    return max(need, 0)


def step(s, i, out):
    k = i.kind
    if k in ("label", "dir"):
        out.append(i.text)
        return
    keys = []
    if k == "pwait":
        keys = list(i.need)
    elif k not in ("wait", "nop", "misc", "branch", "end"):
        keys = list(i.src) + list(i.dst) + list(i.srcc)
    vm = lg = None
    for r in keys:
        if r in s.vm:
            vm = s.vm[r] if vm is None else min(vm, s.vm[r])
        if r in s.lg:
            lg = s.lg[r] if lg is None else min(lg, s.lg[r])
        if r in s.smem:
            lg = 0
    if lg is not None and s.smem:
        lg = 0
    if vm is not None or lg is not None:
        if k in ("vld", "dsr"):
            tbl = s.vm if k == "vld" else s.lg
            vm2 = lg2 = None
            for r in keys:
                samedst = r in i.dst and r not in i.src
                if r in s.vm and not (samedst and k == "vld"):
                    vm2 = s.vm[r] if vm2 is None else min(vm2, s.vm[r])
                if r in s.lg and not (samedst and k == "dsr"):
                    lg2 = s.lg[r] if lg2 is None else min(lg2, s.lg[r])
                if r in s.smem:
                    lg2 = 0
            vm, lg = vm2, lg2
            if lg is not None and s.smem:
                lg = 0
    if vm is not None or lg is not None:
        p = []
        if vm is not None:
            vm = min(vm, 63); p.append(f"vmcnt({vm})")
        if lg is not None:
            lg = min(lg, 15); p.append(f"lgkmcnt({lg})")
        out.append("s_waitcnt " + " ".join(p))
        s.do_wait(vm, lg)
        s.tick(1)
    if k == "pwait":
        return
    n = need_states(s, i)
    while n > 0:
        m = min(n, 16)
        out.append(f"s_nop {m - 1}")
        s.tick(m)
        n -= m
    out.append(i.text)
    if k == "wait":
        s.do_wait(i.vm, i.lg)
    s.tick(i.n if k == "nop" else 1)
    toks = [] if i.tok is None else (list(i.tok) if isinstance(i.tok, (list, tuple)) else [i.tok])
    if k in ("vld", "vst", "dma"):
        s.vm = {a: b + 1 for a, b in s.vm.items()}
        for r in list(i.dst) + toks:
            s.vm[r] = 0
    if k in ("dsr", "dsw"):
        s.lg = {a: b + 1 for a, b in s.lg.items()}
        for r in list(i.dst) + toks:
            s.lg[r] = 0
    if k == "smem":
        s.smem |= set(i.dst)
    for r in i.dst:
        if k == "mfma":
            s.w[r] = [("mfma", 0, (i.passes, tuple(i.dst)))]
        elif k in ("valu", "trans", "salu"):
            s.w[r] = [(k, 0, None)]
        elif k == "dot":
            s.w[r] = [("dot", 0, i.mn)]
        else:
            s.w.pop(r, None)
    if k == "mfma":
        for r in i.srcc:
            s.c[r] = (0, i.passes)
    if hasattr(i, "wide"):
        for r in i.wide:
            s.ws[r] = 0


class Prog:
    def __init__(self):
        self.it = []

    def __call__(self, text, tok=None):
        if isinstance(text, Ins):
            self.it.append(text)
        elif isinstance(text, (list, tuple)):
            for t in text:
                self(t)
        else:
            for line in text.strip().split("\n"):
                line = line.strip()
                if line and not line.startswith(";"):
                    self.it.append(Ins(line, tok=tok))

    def wait(self, need):
        self.it.append(W(need))

    def finalize(self):
        it = self.it
        blocks, cur = [], []
        for i in it:
            if i.kind == "label" and cur:
                blocks.append(cur); cur = []
            cur.append(i)
            if i.kind in ("branch", "end"):
                blocks.append(cur); cur = []
        if cur:
            blocks.append(cur)
        lab = {}
        for n, b in enumerate(blocks):
            for i in b:
                if i.kind == "label":
                    lab[i.name] = n
        succ = []
        for n, b in enumerate(blocks):
            l = b[-1]
            s = []
            if l.kind == "branch":
                s.append(lab[l.target])
                if not l.uncond and n + 1 < len(blocks):
                    s.append(n + 1)
            elif l.kind != "end" and n + 1 < len(blocks):
                s.append(n + 1)
            succ.append(s)
        ent = [None] * len(blocks)
        ent[0] = St()
        outs = [None] * len(blocks)
        work = [0]
        guard = 0
        while work:
            guard += 1
            assert guard < 5000
            n = min(work)
            work.remove(n)
            s = ent[n].copy()
            o = []
            for i in blocks[n]:
                step(s, i, o)
            outs[n] = o
            for m in succ[n]:
                if ent[m] is None:
                    ent[m] = s.copy()
                    ch = True
                else:
                    k0 = ent[m].key()
                    ent[m].merge(s)
                    ch = ent[m].key() != k0
                if ch and m not in work:
                    work.append(m)
        res = []
        for n, b in enumerate(blocks):
            res += outs[n] if outs[n] is not None else [i.text for i in b if i.kind != "pwait"]
        return res


def W(need):
    flat = []
    for x in need:
        rr = regs_of(x)
        flat += rr if rr else [x]
    return Ins("WAIT", need=flat)


def vr(a, n=4, p="v"):
    return f"{p}[{a}:{a + n - 1}]" if n > 1 else f"{p}{a}"


def ar(a, n=4):
    return vr(a, n, "a")


def sr(a, n=2):
    return vr(a, n, "s")


def cost(i):
    k = i.kind
    if k == "trans":
        return 8
    if k in ("pwait",):
        return 4
    return 4
```

```python
from asmlib import *

MB = 1 << 20
WS_Q = 0
WS_KV = 2 * MB
WS_H = 6 * MB
WS_WDT = 13 * MB
WS_WOT = WS_WDT + 7 * 112 * 2048
WS_OF = 16 * MB
WS_G = 18 * MB
WS_T = 24 * MB
WS_SIZE = 0x10000000
X_BYTES = 2048 * 896
WQKV_BYTES = 448 * 2688
WO_BYTES = 448 * 896
WG_BYTES = 448 * 3584
WD_BYTES = 1792 * 896
LOG2E = 1.4426950408889634

MF = "v_mfma_f32_32x32x16_bf16"


def f32(x):
    import struct
    return "0x%08x" % struct.unpack("<I", struct.pack("<f", x))[0]


def mfma(d, a, b, c):
    return Ins(f"{MF} {d}, {a}, {b}, {c}")


def mf16(d, a, b, c):
    return Ins(f"v_mfma_f32_16x16x32_bf16 {d}, {a}, {b}, {c}")


def srd(s, nbytes):
    return [f"s_mov_b32 s{s + 2}, {nbytes}", f"s_mov_b32 s{s + 3}, 0x00020000"]


def icost(i):
    if isinstance(i, str):
        i = Ins(i)
    return 8 if i.kind == "trans" else 4


def spread(slots, items, lo, hi):
    items = [Ins(x) if isinstance(x, str) else x for x in items]
    tot = sum(icost(i) for i in items)
    n = hi - lo + 1
    acc = 0
    for i in items:
        k = lo + min(n - 1, int(acc * n / tot))
        slots[k].append(i)
        acc += icost(i)


class Stamps:
    def __init__(self, on, kidx, s0=64):
        self.on, self.kidx, self.s0, self.n = on, kidx, s0, 0

    def mark(self, real=False):
        if not self.on:
            return []
        s = self.s0 + 2 * self.n
        self.n += 1
        if real:
            return [f"s_memrealtime s[{s}:{s + 1}]"]
        return [f"s_memtime s[{s}:{s + 1}]"] + (["s_memrealtime s[96:97]"] if self.n == 1 else [])

    def value(self, sreg, sub):
        if not self.on:
            return []
        s = self.s0 + 2 * self.n
        self.n += 1
        return ["s_waitcnt lgkmcnt(0)", f"s_sub_u32 s{s}, {sub}, {sreg}", f"s_add_u32 s{s}, s{s}, s{self.s0}"]

    def dump(self, ws_srd, swave, sblk, v=(1, 2)):
        if not self.on:
            return []
        o = ["s_waitcnt vmcnt(0)", "s_memrealtime s[98:99]", "s_memtime s[94:95]", "s_waitcnt lgkmcnt(0)", f"s_lshl_b32 s100, {sblk}, 8", f"s_lshl_b32 s101, {swave}, 6", "s_add_u32 s100, s100, s101",
             f"s_add_u32 s100, s100, {WS_T + self.kidx * 65536}", f"v_mov_b32 v{v[0]}, s100"]
        for i in range(self.n):
            o += [f"v_mov_b32 v{v[1]}, s{self.s0 + 2 * i}", f"buffer_store_dword v{v[1]}, v{v[0]}, {ws_srd}, 0 offen offset:{4 * i}"]
        for i, r in ((13, 94), (14, 96), (15, 98)):
            o += [f"v_mov_b32 v{v[1]}, s{r}", f"buffer_store_dword v{v[1]}, v{v[0]}, {ws_srd}, 0 offen offset:{4 * i}"]
        return o


def silu_ops(regs, tmp, scale_neg_log2e):
    o = []
    for i in range(0, len(regs), 2):
        a, b, ta, tb = regs[i], regs[i + 1], tmp[i], tmp[i + 1]
        o += [f"v_mul_f32 v{ta}, {scale_neg_log2e}, v{a}", f"v_mul_f32 v{tb}, {scale_neg_log2e}, v{b}",
              f"v_exp_f32 v{ta}, v{ta}", f"v_exp_f32 v{tb}, v{tb}",
              f"v_add_f32 v{ta}, 1.0, v{ta}", f"v_add_f32 v{tb}, 1.0, v{tb}",
              f"v_rcp_f32 v{ta}, v{ta}", f"v_rcp_f32 v{tb}, v{tb}",
              f"v_mul_f32 v{a}, v{a}, v{ta}", f"v_mul_f32 v{b}, v{b}, v{tb}"]
    return o
```

```python
from common import *

X = lambda ks: 16 + 4 * ks
ACC = lambda u, i: 128 + 64 * u + 16 * i
RING = 40
LEAD = 16
TRD = 6
FR = lambda n: 4 * (n % 8)


def tr_reads(n):
    j, i = n >> 2, n & 3
    pos = j % RING
    va = 1 + 2 * (pos >> 4) + (i & 1)
    off = (pos & 15) * 4096 + (i >> 1) * 2048
    return [Ins(f"ds_read_b64_tr_b16 {ar(FR(n), 2)}, v{va} offset:{off}"),
            Ins(f"ds_read_b64_tr_b16 {ar(FR(n) + 2, 2)}, v{va} offset:{off + 512}")]


def dma(j, info):
    va, s, step = info(j)
    return ([Ins(f"s_add_u32 m0, s23, {(j % RING) * 4096}")],
            [Ins(f"buffer_load_dwordx4 v{va}, {sr(s, 4)}, s24 offen lds", tok=f"w{j}")],
            [Ins(x) for x in step])


def base_slots(nslab, info):
    N = 4 * nslab
    sl = [[] for _ in range(N)]
    for n in range(N):
        if n & 1:
            sl[n].append(W([ar(FR(m)) for m in (n + 1, n + 2) if m < N]))
        m = n + TRD
        if m < N:
            if m % 16 == 0:
                g = m // 16
                sl[n].append(W([f"w{j}" for j in range(4 * g, min(4 * g + 4, nslab))]))
                sl[n].append(Ins("s_barrier"))
        if (n & 3) == 0 and (n >> 2) + LEAD < nslab:
            sl[n] = dma((n >> 2) + LEAD, info)[0] + sl[n]
        if m < N:
            sl[n] += tr_reads(m)
        if (n & 3) == 1 and (n >> 2) + LEAD < nslab:
            d = dma((n >> 2) + LEAD, info)
            sl[n] += d[1] + d[2]
    return sl


def centre_ops(ks, scale):
    o = []
    for r in range(4):
        x = X(ks) + r
        t = 192 + 2 * ((4 * ks + r) % 4)
        a = [f"v_dot2_f32_bf16 v{t}, v{x}, s25, v9", f"v_dot2_f32_bf16 v{t + 1}, v{x}, s26, v9"]
        b = []
        if PLAIN:
            a = [f"v_lshlrev_b32 v{t}, 16, v{x}", f"v_and_b32 v{t + 1}, 0xffff0000, v{x}"]
            if scale:
                b += [f"v_fma_f32 v{t}, v{t}, v10, v11", f"v_fma_f32 v{t + 1}, v{t + 1}, v10, v11"]
            else:
                b += [f"v_add_f32 v{t}, v{t}, v9", f"v_add_f32 v{t + 1}, v{t + 1}, v9"]
        elif scale:
            b.append(f"v_pk_mul_f32 {vr(t, 2)}, {vr(t, 2)}, v[10:11] op_sel_hi:[1,0]")
        b.append(f"v_cvt_pk_bf16_f32 v{x}, v{t}, v{t + 1}")
        o.append((a, b))
    return o


def centre_stream(scale):
    regs = [x for ks in range(28) for x in centre_ops(ks, scale)]
    seq = []
    for r in range(len(regs) + 2):
        cur = []
        if r < len(regs):
            cur += regs[r][0]
        if r >= 2:
            cur += regs[r - 2][1]
        seq.append(cur)
    return seq


SC = ""


def swiglu(u, pk):
    o = {0: [], 1: []}
    for b in range(2):
        G, U = ACC(u, b), ACC(u, 2 + b)
        for r in range(0, 16, 2):
            g0, g1, u0, u1 = G + r, G + r + 1, U + r, U + r + 1
            if pk:
                o[b] += [f"v_pk_mul_f32 {vr(u0, 2)}, {vr(g0, 2)}, {vr(u0, 2)}",
                         f"v_pk_mul_f32 {vr(g0, 2)}, {vr(g0, 2)}, v[10:11] op_sel_hi:[1,0]",
                         f"v_exp_f32 v{g0}, v{g0}", f"v_exp_f32 v{g1}, v{g1}",
                         None,
                         f"v_pk_fma_f32 {vr(g0, 2)}, {vr(g0, 2)}, v[10:11], v[10:11] op_sel:[0,1,1] op_sel_hi:[1,1,1]",
                         f"v_rcp_f32 v{g0}, v{g0}", f"v_rcp_f32 v{g1}, v{g1}",
                         None,
                         f"v_pk_mul_f32 {vr(u0, 2)}, {vr(u0, 2)}, {vr(g0, 2)}",
                         f"v_cvt_pk_bf16_f32 v{G + r // 2}, v{u0}, v{u1}"]
            else:
                o[b] += [f"v_mul_f32 v{u0}, v{g0}, v{u0}", f"v_mul_f32 v{u1}, v{g1}, v{u1}",
                         f"v_mul_f32 v{g0}, v10, v{g0}", f"v_mul_f32 v{g1}, v10, v{g1}",
                         f"v_exp_f32 v{g0}, v{g0}", f"v_exp_f32 v{g1}, v{g1}",
                         f"v_fma_f32 v{g0}, v{g0}, v11, v11", f"v_fma_f32 v{g1}, v{g1}, v11, v11",
                         f"v_rcp_f32 v{g0}, v{g0}", f"v_rcp_f32 v{g1}, v{g1}",
                         f"v_mul_f32 v{u0}, v{u0}, v{g0}", f"v_mul_f32 v{u1}, v{u1}, v{g1}",
                         f"v_cvt_pk_bf16_f32 v{G + r // 2}, v{u0}, v{u1}"]
            if r in (6, 14):
                s = r >> 3
                o[b].append(f"buffer_store_dwordx4 {vr(G + 4 * s)}, v0, s[16:19], s{29 + 2 * u + b} offen offset:{s * 2048}{SC}")
    if pk:
        res = []
        a = [x for x in o[0] if x]
        b = [x for x in o[1] if x]
        for x, y in zip(a, b):
            res += [x, y]
        return res
    return o[0] + o[1]


def sentinels(sl):
    if not FUSE3:
        return
    sl[36] += [Ins(x) for x in ["s_lshl_b32 s56, s2, 2", "s_add_u32 s56, s56, s20", "s_lshl_b32 s56, s56, 11", f"s_add_u32 s56, s56, {WS_OF}"]]
    sl[37] += [Ins(f"v_mov_b32 v{200 + r}, -1") for r in range(4)]
    sl[38].append(Ins(f"buffer_store_dwordx4 v[200:203], v0, s[16:19], s56 offen{SC}"))
    sl[39].append(Ins(f"buffer_store_dwordx4 v[200:203], v0, s[16:19], s56 offen offset:1024{SC}"))


def start_stream(p, sl, mf, cs):
    for n in range(TRD):
        p(tr_reads(n))
    for r in range(6):
        p(cs[r])
    for ks in range(27):
        items = [x for r in range(4 * ks + 6, 4 * ks + 10) if r < len(cs) for x in cs[r]]
        spread(sl, items, 4 * ks, 4 * ks + 3)
    p.wait([ar(FR(0)), ar(FR(1))])


def gen_p1(cfg):
    p = Prog()
    st = Stamps(cfg.get("stamps"), 0)
    pk = cfg.get("pk", False)
    global SC, PLAIN, FUSE3
    FUSE3 = cfg.get("fuse3", 0)
    SC = cfg.get("sc1", "")
    PLAIN = cfg.get("plain", 0)
    p(st.mark())
    p("""
    s_cmp_ge_u32 s2, 256
    s_cbranch_scc1 P1_END
    s_load_dwordx2 s[4:5], s[0:1], 0
    s_load_dwordx2 s[12:13], s[0:1], 8
    s_load_dwordx4 s[40:43], s[0:1], 32
    s_load_dwordx2 s[16:17], s[0:1], 72
    s_load_dwordx2 s[44:45], s[0:1], 48
    s_load_dwordx2 s[46:47], s[0:1], 16
    v_lshrrev_b32 v1, 6, v0
    v_and_b32 v13, 63, v0
    v_readfirstlane_b32 s20, v1
    s_and_b32 s35, s2, 7
    s_lshr_b32 s36, s2, 3
    """)
    if cfg.get("map", 4) == 2:
        p("""
        s_and_b32 s21, s35, 1
        s_lshl_b32 s21, s21, 3
        s_and_b32 s37, s36, 7
        s_add_u32 s21, s21, s37
        s_lshr_b32 s22, s35, 1
        s_lshl_b32 s22, s22, 2
        s_lshr_b32 s37, s36, 3
        s_add_u32 s22, s22, s37
        """)
    else:
        p("""
        s_and_b32 s21, s35, 3
        s_lshl_b32 s21, s21, 2
        s_and_b32 s37, s36, 3
        s_add_u32 s21, s21, s37
        s_lshr_b32 s22, s35, 2
        s_lshr_b32 s37, s36, 2
        s_lshl_b32 s37, s37, 1
        s_add_u32 s22, s22, s37
        """)
    p(srd(4, X_BYTES))
    p(f"""
    v_lshrrev_b32 v14, 3, v13
    v_lshrrev_b32 v15, 4, v13
    v_and_b32 v9, 7, v13
    v_xor_b32 v10, v9, v15
    v_lshlrev_b32 v10, 4, v10
    v_mul_u32_u24 v11, 896, v14
    v_add_u32 v128, v10, v11
    v_xor_b32 v129, 64, v128
    v_add_u32 v130, 14336, v128
    v_add_u32 v129, 7168, v129
    v_add_u32 v131, 14336, v129
    s_lshl_b32 s48, s21, 2
    s_add_u32 s48, s48, s20
    s_mul_i32 s35, s48, {32 * 896}
    s_mul_i32 s28, s20, 28672
    s_add_u32 s28, s28, 49152
    s_lshl_b32 s23, s20, 10
    """)
    for line in range(7):
        for b in range(4):
            p(f"s_add_u32 m0, s28, {(line * 4 + b) * 1024 - line * 128}")
            p(f"buffer_load_dwordx4 v{128 + b}, s[4:7], s35 offen offset:{line * 128} lds", tok=f"x{line}")
    p(f"""
    v_and_b32 v10, 1, v15
    v_lshlrev_b32 v10, 2, v10
    v_xor_b32 v10, v9, v10
    v_lshlrev_b32 v10, 4, v10
    v_mul_u32_u24 v8, 2688, v14
    v_add_u32 v8, v8, v10
    s_and_b32 s36, s20, 1
    s_lshr_b32 s37, s20, 1
    """)
    p(srd(12, WQKV_BYTES) + srd(16, WS_SIZE))
    common2 = f"""
    v_and_b32 v140, 31, v13
    v_lshrrev_b32 v141, 5, v13
    v_lshlrev_b32 v0, 4, v13
    v_bfe_u32 v142, v13, 2, 2
    v_lshl_add_u32 v143, v141, 3, v142
    v_lshlrev_b32 v143, 7, v143
    v_bfe_u32 v144, v13, 4, 1
    v_bfe_u32 v145, v13, 1, 1
    v_lshl_add_u32 v144, v144, 1, v145
    v_lshrrev_b32 v142, 1, v142
    v_lshlrev_b32 v142, 2, v142
    v_xor_b32 v144, v144, v142
    v_lshl_add_u32 v143, v144, 4, v143
    v_and_b32 v144, 1, v13
    v_lshl_add_u32 v1, v144, 3, v143
    v_xor_b32 v2, 64, v1
    v_add_u32 v3, 0x10000, v1
    v_add_u32 v4, 0x10000, v2
    v_add_u32 v5, 0x20000, v1
    v_add_u32 v6, 0x20000, v2
    v_bfe_u32 v142, v13, 1, 3
    v_xor_b32 v142, v142, v141
    v_lshlrev_b32 v142, 4, v142
    v_lshl_add_u32 v142, v140, 7, v142
    v_add_u32 v132, s28, v142
    v_xor_b32 v133, 32, v132
    v_xor_b32 v134, 64, v132
    v_xor_b32 v135, 0x60, v132
    v_mov_b32 v136, 0
    v_mov_b32 v137, 0
    v_mov_b32 v138, 0
    v_mov_b32 v139, 0
    s_movk_i32 s25, 0x3f80
    s_mov_b32 s26, 0x3f800000
    s_mov_b32 s27, 0x3f803f80
    """

    def stats():
        def dots(line):
            for r in range(16):
                x = 16 + 16 * line + r
                p(f"v_dot2c_f32_bf16 v{136 + (r & 1)}, s27, v{x}\nv_dot2c_f32_bf16 v{138 + (r & 1)}, v{x}, v{x}")
        for line in range(7):
            p.wait([f"x{line}"])
            for c in range(4):
                p(f"ds_read_b128 {vr(X(4 * line + c))}, v{132 + c} offset:{line * 4096}")
            if line:
                dots(line - 1)
        p(st.mark())
        dots(6)
        p(f"""
        v_add_f32 v136, v136, v137
        v_add_f32 v138, v138, v139
        v_mov_b32 v137, v136
        v_mov_b32 v139, v138
        v_permlane32_swap_b32 v136, v137
        v_permlane32_swap_b32 v138, v139
        v_add_f32 v136, v136, v137
        v_add_f32 v138, v138, v139
        v_mul_f32 v9, {f32(-1.0 / 448)}, v136
        v_mul_f32 v138, {f32(1.0 / 448)}, v138
        v_fma_f32 v138, -v9, v9, v138
        v_max_f32 v138, 0, v138
        v_add_f32 v11, {f32(1e-5)}, v138
        v_rsq_f32 v12, v11
        """)

    def first_slabs(info, lo, hi):
        for j in range(lo, hi):
            d = dma(j, info)
            p(d[0] + d[1] + d[2])

    def run(sl, mf):
        for n in range(len(sl)):
            p(mf(n))
            p(sl[n])

    p("s_cmp_ge_u32 s22, 14\ns_cbranch_scc1 P1_LIGHT")
    p(f"""
    v_mul_u32_u24 v7, 3584, v14
    v_add_u32 v7, v7, v10
    s_cmp_eq_u32 s37, 0
    s_cselect_b32 s8, s40, s42
    s_cselect_b32 s9, s41, s43
    s_mul_i32 s24, s36, 28672
    s_lshl_b32 s38, s22, 8
    s_add_u32 s24, s24, s38
    s_mul_i32 s49, s20, {8 * 2688}
    s_lshl_b32 s38, s22, 7
    s_add_u32 s49, s49, s38
    """)
    p(srd(8, WG_BYTES))

    def hinfo(j):
        if j < 56:
            step = [f"s_add_u32 s24, s24, {16 * 3584}"]
            if j == 27:
                step = [f"s_sub_u32 s24, s24, {27 * 16 * 3584 - 128}"]
            if j == 55:
                step = ["s_mov_b32 s24, s49"]
            return 7, 8, step
        return 8, 12, [f"s_add_u32 s24, s24, {32 * 2688}"]

    first_slabs(hinfo, 0, 12)
    p(common2)
    p(f"""
    s_lshr_b32 s38, s48, 1
    s_mul_i32 s29, s38, {112 * 2048}
    s_lshl_b32 s38, s36, 10
    s_add_u32 s29, s29, s38
    s_lshl_b32 s38, s22, 14
    s_add_u32 s29, s29, s38
    s_add_u32 s29, s29, {WS_H}
    s_add_u32 s30, s29, 4096
    s_add_u32 s31, s29, 8192
    s_add_u32 s32, s29, 12288
    s_cmp_lt_u32 s22, 7
    s_cselect_b32 s34, 17, 18
    s_cselect_b32 s38, 0, 7
    s_cselect_b32 s33, {WS_Q}, {WS_KV}
    s_cselect_b32 s50, {f32(28 ** -0.5 * LOG2E)}, 1.0
    s_sub_u32 s38, s22, s38
    s_lshl_b32 s38, s38, 4
    s_sub_u32 s39, s34, 6
    s_lshl_b32 s39, s48, s39
    s_add_u32 s33, s33, s39
    v_add_u32 v142, s38, v141
    v_lshlrev_b32 v143, 3, v140
    v_lshlrev_b32 v144, 4, v140
    v_add_u32 v144, 0x100, v144
    """)
    for k in range(8):
        p(f"""
        v_add_u32 v145, {2 * k}, v142
        v_mul_u32_u24 v146, 147, v145
        v_lshrrev_b32 v146, 10, v146
        v_mad_i32_i24 v145, v146, -7, v145
        v_cmp_eq_u32 vcc, 6, v145
        v_lshrrev_b32 v147, 1, v145
        v_lshl_add_u32 v147, v147, 9, v144
        v_and_b32 v145, 1, v145
        v_lshl_add_u32 v147, v145, 3, v147
        v_cndmask_b32 v147, v147, v143, vcc
        v_lshl_add_u32 v147, v146, s34, v147
        v_accvgpr_write_b32 a{32 + k}, v147
        """)
    p(st.mark())
    stats()
    p(f"v_mul_f32 v10, {f32(-LOG2E)}, v12\nv_mul_f32 v12, s50, v12")
    p.wait([f"w{j}" for j in range(4)])
    p("s_barrier")
    first_slabs(hinfo, 12, 16)
    sl = base_slots(70, hinfo)
    start_stream(p, sl, None, centre_stream(False))
    sentinels(sl)
    spread(sl, swiglu(0, pk), 114, 222)
    spread(sl, swiglu(1, pk) + [f"v_accvgpr_read_b32 v{160 + k}, a{32 + k}" for k in range(8)], 226, 277)

    def hm(n):
        j, i = n >> 2, n & 3
        if j < 56:
            u, ks = divmod(j, 28)
            a = vr(ACC(u, i), 16)
            return mfma(a, ar(FR(n)), vr(X(ks)), "0" if ks == 0 else a)
        ks = 2 * (j - 56) + (i >> 1)
        a = vr(ACC(0, i & 1), 16)
        return mfma(a, ar(FR(n)), vr(X(ks)), "0" if ks == 0 else a)

    p(st.mark())
    sl[111] += [Ins(x) for x in st.mark()]
    sl[223] += [Ins(x) for x in st.mark()]
    run(sl, hm)
    p(st.mark())
    for b in range(2):
        for rq in range(4):
            a = ACC(0, b) + 4 * rq
            p(f"""
            v_pk_mul_f32 {vr(a, 2)}, {vr(a, 2)}, v[12:13] op_sel_hi:[1,0]
            v_pk_mul_f32 {vr(a + 2, 2)}, {vr(a + 2, 2)}, v[12:13] op_sel_hi:[1,0]
            v_cvt_pk_bf16_f32 v{a}, v{a}, v{a + 1}
            v_cvt_pk_bf16_f32 v{a + 1}, v{a + 2}, v{a + 3}
            buffer_store_dwordx2 {vr(a, 2)}, v{160 + 4 * b + rq}, s[16:19], s33 offen{SC}
            """)
    p(st.mark())
    p(st.dump("s[16:19]", "s20", "s2"))
    p("P1_END:\ns_endpgm")
    st.n = 1
    p("P1_LIGHT:")
    p(f"""
    s_sub_u32 s38, s22, 14
    s_mul_i32 s51, s38, 192
    s_mul_i32 s24, s36, {8 * 2688}
    s_lshl_b32 s39, s37, 7
    s_add_u32 s24, s24, s39
    s_lshl_b32 s39, s51, 1
    s_add_u32 s24, s24, s39
    s_add_u32 s24, s24, 1792
    """)

    def linfo(j):
        step = [f"s_add_u32 s24, s24, {16 * 2688}"]
        if j == 27:
            step = [f"s_sub_u32 s24, s24, {27 * 16 * 2688 - 256}"]
        return 8, 12, step

    first_slabs(linfo, 0, 12)
    p(common2)
    p(f"""
    v_mul_u32_u24 v7, 896, v14
    v_add_u32 v7, v7, v10
    s_lshl_b32 s38, s38, 4
    s_add_u32 s38, s38, s21
    s_lshl_b32 s38, s38, 2
    s_add_u32 s38, s38, s20
    s_lshl_b32 s52, s38, 14
    s_add_u32 s52, s52, {WS_WDT}
    s_mul_i32 s39, s38, 4682
    s_lshr_b32 s39, s39, 16
    s_mul_i32 s53, s39, 14
    s_sub_u32 s53, s38, s53
    s_mul_i32 s53, s53, {128 * 896}
    s_lshl_b32 s39, s39, 7
    s_add_u32 s53, s53, s39
    s_sub_u32 s39, s38, 98
    s_and_b32 s54, s39, 3
    s_mul_i32 s54, s54, {4 * 28 * 896}
    s_lshr_b32 s39, s39, 2
    s_lshl_b32 s39, s39, 7
    s_add_u32 s54, s54, s39
    s_cmp_lt_u32 s38, 98
    s_cselect_b32 s53, s53, s54
    s_cselect_b32 s54, 1, 0
    s_cselect_b32 s8, s44, s46
    s_cselect_b32 s9, s45, s47
    s_lshl_b32 s10, s54, 1
    s_lshl_b32 s10, {WO_BYTES}, s10
    s_lshl_b32 s54, 3584, s54
    s_mov_b32 s11, 0x00020000
    s_lshl_b32 s55, s20, 14
    s_add_u32 s55, s55, 0x10000
    s_lshl_b32 s33, s48, 12
    s_add_u32 s33, s33, {WS_KV + 2048}
    v_add_u32 v142, s51, v140
    v_lshlrev_b32 v143, 9, v141
    v_bfrev_b32 v144, 1
    """)
    for k in range(8):
        p(f"""
        v_add_u32 v145, {32 * k}, v142
        v_lshrrev_b32 v146, 2, v145
        v_mul_u32_u24 v146, 147, v146
        v_lshrrev_b32 v146, 10, v146
        v_mul_u32_u24 v147, 28, v146
        v_sub_u32 v145, v145, v147
        v_cmp_eq_u32 vcc, 27, v145
        v_lshl_add_u32 v147, v145, 4, v143
        v_lshl_add_u32 v147, v146, 18, v147
        v_accvgpr_write_b32 a{32 + k}, v147
        v_cndmask_b32 v147, v144, v147, vcc
        v_accvgpr_write_b32 a{40 + k}, v147
        """)
    for r in range(4):
        p(f"v_accvgpr_write_b32 a{48 + r}, s27")
    p(f"v_lshlrev_b32 v14, 9, v141\nv_sub_u32 v14, v1, v14\nv_add_u32 v14, s55, v14\nv_xor_b32 v15, 64, v14")
    p(st.mark())
    stats()
    p("v_mov_b32 v10, v12\nv_mul_f32 v11, v9, v12")
    p.wait([f"w{j}" for j in range(4)])
    p("s_barrier")
    first_slabs(linfo, 12, 16)
    sl = base_slots(56, linfo)
    start_stream(p, sl, None, centre_stream(True))
    sentinels(sl)

    def vepi(u):
        o = []
        for i in range(4):
            a = ACC(u, i)
            o += [f"v_accvgpr_read_b32 v12, a{32 + 4 * u + i}", f"v_accvgpr_read_b32 v13, a{40 + 4 * u + i}"]
            for r in range(8):
                o.append(f"v_cvt_pk_bf16_f32 v{a + r}, v{a + 2 * r}, v{a + 2 * r + 1}")
            for s in range(2):
                o.append(f"buffer_store_dwordx4 {vr(a + 4 * s)}, v12, s[16:19], s33 offen offset:{1024 * s}{SC}")
                o.append(f"buffer_store_dwordx4 a[48:51], v13, s[16:19], s33 offen offset:{1024 * s + 16}{SC}")
        return o

    spread(sl, vepi(0), 114, 140)
    for t in range(16):
        n, half = t >> 1, t & 1
        k = 4 * 40 + 2 * t
        sl[k].insert(0, Ins(f"s_add_u32 m0, s55, {t * 1024}"))
        sl[k].append(Ins(f"buffer_load_dwordx4 v7, s[8:11], s53 offen lds", tok="tp"))
        sl[k].append(Ins(f"s_add_u32 s53, s53, {'s54' if t % 4 == 3 else 7168}"))

    def lm(n):
        j, i = n >> 2, n & 3
        u, ks = divmod(j, 28)
        a = vr(ACC(u, i), 16)
        return mfma(a, vr(X(ks)), ar(FR(n)), "0" if ks == 0 else a)

    p(st.mark())
    sl[111] += [Ins(x) for x in st.mark()]
    run(sl, lm)
    p(st.mark())
    p.wait(["tp"])
    for n in range(8):
        for b in range(2):
            d = 16 + 8 * n + 4 * b
            p(f"ds_read_b64_tr_b16 {vr(d, 2)}, v{14 + b} offset:{n * 2048}")
            p(f"ds_read_b64_tr_b16 {vr(d + 2, 2)}, v{14 + b} offset:{n * 2048 + 1024}")
    p(vepi(1))
    for n in range(8):
        for b in range(2):
            d = 16 + 8 * n + 4 * b
            p(f"buffer_store_dwordx4 {vr(d)}, v0, s[16:19], s52 offen offset:{(n & 1) * 2048 + b * 1024}{SC}")
        if n & 1:
            p("s_add_u32 s52, s52, 4096")
    p(st.mark())
    p(st.dump("s[16:19]", "s20", "s2"))
    p("s_endpgm")
    return dict(name="p1_kernel", code=p.finalize(), grid=256, lds=163840, vgpr=256, agpr=64)
```

```python
from common import *
from p3 import tile_map

S = lambda n: 16 + 16 * (n & 1)
P = 48
Q = lambda j, ks: 56 + 8 * j + 4 * ks
KV = lambda slot, part: 88 + 16 * slot + 4 * part
O = lambda j: ar(16 * j, 16)
D = lambda j: ar(64 + 16 * j, 16)
DR = lambda s, part: 128 + 16 * s + 4 * part
DSRD = {0: 12, 1: 16, 2: 20, 3: 24}


def kv_load(slot, part, t):
    va = (5 + t) if part == 1 else (1 + t)
    off = {0: 768, 1: 0, 2: 2048, 3: 3072}[part]
    return Ins(f"buffer_load_dwordx4 {vr(KV(slot, part))}, v{va}, s[8:11], 0 offen offset:{off}")


def d_load(s, part, kk):
    return Ins(f"buffer_load_dwordx4 {ar(DR(s, part))}, v{1 + (kk >> 1)}, {sr(DSRD[part], 4)}, 0 offen offset:{(kk & 1) * 2048}")


def plain_tail(p, st, SC):
    for j in range(1, 4):
        p(f"""
        s_xor_b32 s36, s28, {j}
        s_mul_i32 s36, s36, 12288
        s_add_u32 s36, s36, {(j - 1) * 4096}
        v_add_u32 v{8 + j}, s36, v1
        """)
    p(f"v_cvt_pk_bf16_f32 v{P + 7}, v{S(1) + 14}, v{S(1) + 15}")
    p("s_mul_i32 s36, s28, 12288\nv_add_u32 v12, s36, v1")
    p(mfma(O(3), vr(KV(3, 3)), vr(P + 4), O(3)))
    for base, acc in ((0, 64), (49152, 0)):
        for j in range(1, 4):
            for q in range(4):
                p(f"ds_write_b128 v{8 + j}, {ar(acc + 16 * j + 4 * q)} offset:{base + q * 1024}", tok="xw")
    OA, DA, RD = 160, 176, 88
    for r in range(16):
        p(f"v_accvgpr_read_b32 v{OA + r}, a{r}\nv_accvgpr_read_b32 v{DA + r}, a{64 + r}")
    p.wait(["xw"])
    p("s_barrier")
    for base, rd in ((49152, 88), (0, 192)):
        for j in range(3):
            for q in range(4):
                p(f"ds_read_b128 {vr(rd + 16 * j + 4 * q)}, v12 offset:{base + j * 4096 + q * 1024}")
    p(f"""
    s_lshl_b32 s36, s30, 1
    s_lshr_b32 s37, s28, 1
    s_add_u32 s36, s36, s37
    s_lshl_b32 s36, s36, 16
    s_lshl_b32 s37, s29, 12
    s_add_u32 s36, s36, s37
    s_and_b32 s37, s28, 1
    s_lshl_b32 s37, s37, 10
    s_add_u32 s36, s36, s37
    s_add_u32 s51, s36, {WS_OF}
    s_lshl_b32 s36, s2, 13
    s_lshl_b32 s37, s28, 11
    s_add_u32 s36, s36, s37
    s_add_u32 s52, s36, {WS_G}
    s_mov_b32 s53, {f32(2.0 ** -60)}
    v_mov_b32 v11, {f32(2.0 ** 60)}
    """)
    for j in range(3):
        for r in range(0, 16, 2):
            p(f"v_pk_add_f32 {vr(OA + r, 2)}, {vr(OA + r, 2)}, {vr(88 + 16 * j + r, 2)}")
    p(f"""
    v_mov_b32 v9, v{OA + 12}
    v_mov_b32 v10, v{OA + 12}
    v_permlane32_swap_b32 v9, v10
    v_med3_f32 v9, v10, s53, v11
    v_cmp_neq_f32 vcc, v9, v10
    s_cbranch_vccnz P2_FB
    P2_NORM:
    v_rcp_f32 v10, v10
    """)
    for j in range(3):
        for r in range(0, 16, 2):
            p(f"v_pk_add_f32 {vr(DA + r, 2)}, {vr(DA + r, 2)}, {vr(192 + 16 * j + r, 2)}")
    for r in range(0, 16, 2):
        p(f"v_pk_mul_f32 {vr(OA + r, 2)}, {vr(OA + r, 2)}, v[10:11] op_sel_hi:[1,0]")
    for r in range(8):
        p(f"v_cvt_pk_bf16_f32 v{16 + r}, v{OA + 2 * r}, v{OA + 2 * r + 1}")
    p(f"""
    v_cndmask_b32 v22, 0, v22, s[44:45]
    v_cndmask_b32 v23, 0, v23, s[44:45]
    buffer_store_dwordx4 v[16:19], v1, s[4:7], s51 offen{SC}
    buffer_store_dwordx4 v[20:23], v1, s[4:7], s51 offen offset:2048{SC}
    s_mov_b32 s36, {f32(-LOG2E)}
    """)
    p(silu_ops([DA + r for r in range(16)], [192 + r for r in range(16)], "s36"))
    for r in range(8):
        p(f"v_cvt_pk_bf16_f32 v{24 + r}, v{DA + 2 * r}, v{DA + 2 * r + 1}")
    p(f"""
    buffer_store_dwordx4 v[24:27], v1, s[40:43], s52 offen{SC}
    buffer_store_dwordx4 v[28:31], v1, s[40:43], s52 offen offset:1024{SC}
    """)
    p(st.mark())
    p(st.dump("s[4:7]", "s28", "s2"))
    p("P2_END:\ns_endpgm")


def fused_tail(p, st, cfg):
    OA, DA = 160, 176
    WO = lambda k, c: 128 + 8 * k + 4 * c
    OFR = lambda k: 88 + 4 * k
    A0, A1, XR = 32, 48, 240
    p(f"v_cvt_pk_bf16_f32 v{P + 7}, v{S(1) + 14}, v{S(1) + 15}")
    p(mfma(O(3), vr(KV(3, 3)), vr(P + 4), O(3)))
    for j in range(1, 4):
        for q in range(4):
            p(f"ds_write_b128 v{8 + j}, {ar(16 * j + 4 * q)} offset:{49152 + q * 1024}", tok="xw")
    for rq in range(4):
        p(f"buffer_load_dwordx2 {vr(240 + 2 * rq, 2)}, v152, s[40:43], 0 offen offset:{rq * 16}")
    for r in range(16):
        p(f"v_accvgpr_read_b32 v{OA + r}, a{r}")
    p.wait(["xw"])
    p("s_barrier")
    for j in range(3):
        for q in range(4):
            p(f"ds_read_b128 {vr(88 + 16 * j + 4 * q)}, v12 offset:{49152 + j * 4096 + q * 1024}")
    for j in range(1, 4):
        for q in range(4):
            p(f"ds_write_b128 v{8 + j}, {ar(64 + 16 * j + 4 * q)} offset:{q * 1024}", tok="dw")
    wl = [f"ds_read_b128 {ar(WO(k, c))}, v{157 + c} offset:{k * 2048}" for k in range(16) for c in range(2)]
    for j in range(3):
        for r in range(0, 16, 2):
            p(f"v_pk_add_f32 {vr(OA + r, 2)}, {vr(OA + r, 2)}, {vr(88 + 16 * j + r, 2)}")
    p(f"""
    v_mov_b32 v14, v{OA + 12}
    v_mov_b32 v15, v{OA + 12}
    v_permlane32_swap_b32 v14, v15
    v_med3_f32 v14, v15, s53, v154
    v_cmp_neq_f32 vcc, v14, v15
    s_cbranch_vccnz P2_FB
    P2_NORM:
    v_rcp_f32 v14, v15
    """)
    for r in range(0, 16, 2):
        p(f"v_pk_mul_f32 {vr(OA + r, 2)}, {vr(OA + r, 2)}, v[14:15] op_sel_hi:[1,0]")
    for h in range(2):
        for r in range(4 * h, 4 * h + 4):
            p(f"v_cvt_pk_bf16_f32 v{16 + r}, v{OA + 2 * r}, v{OA + 2 * r + 1}")
        if h:
            p("v_cndmask_b32 v22, 0, v22, s[44:45]\nv_cndmask_b32 v23, 0, v23, s[44:45]")
        for r in range(4 * h, 4 * h + 4):
            p(f"v_min_u32 v{16 + r}, -2, v{16 + r}")
        p(f"buffer_store_dwordx4 {vr(16 + 4 * h)}, v1, s[4:7], s51 offen offset:{2048 * h} sc1")
    p(st.mark())
    p("s_cmp_ge_u32 s33, 28\ns_cbranch_scc1 P2_DONE")
    ofl = lambda k: f"buffer_load_dwordx4 {vr(OFR(k))}, v{1 + ((k >> 1) & 3)}, s[4:7], s{54 + (k >> 3)} offen offset:{(k & 1) * 2048} sc1"
    when = cfg.get("ofwhen", 1)
    if when == 0:
        p([ofl(k) for k in range(16)])
    for r in range(16):
        p(f"v_accvgpr_read_b32 v{DA + r}, a{64 + r}")
    p.wait(["dw", "wo"])
    p("s_barrier")
    for j in range(3):
        for q in range(4):
            p(f"ds_read_b128 {vr(192 + 16 * j + 4 * q)}, v12 offset:{j * 4096 + q * 1024}")
    if when == 1:
        p([ofl(k) for k in range(16)])
    p(f"s_mov_b32 s36, {f32(-LOG2E)}\ns_mov_b32 s35, 0x200000")
    it = []
    for j in range(3):
        for r in range(0, 16, 2):
            it.append(f"v_pk_add_f32 {vr(DA + r, 2)}, {vr(DA + r, 2)}, {vr(192 + 16 * j + r, 2)}")
    p(it)
    it = silu_ops([DA + r for r in range(16)], [192 + r for r in range(16)], "s36")
    for r in range(8):
        it += [f"v_lshlrev_b32 v{208 + 2 * r}, 16, v{XR + r}", f"v_and_b32 v{209 + 2 * r}, 0xffff0000, v{XR + r}"]
    for n in range(32):
        p(wl[n])
        p(it[3 * n:3 * n + 3])
    if when == 2:
        p([ofl(k) for k in range(16)])
    p(st.mark())
    for h in range(8):
        f = OFR(2 * h)
        p(f"""
        P2_CK{h}:
        v_max3_u32 v13, v{f}, v{f + 1}, v{f + 2}
        v_max3_u32 v14, v{f + 3}, v{f + 4}, v{f + 5}
        v_max3_u32 v13, v13, v{f + 6}, v{f + 7}
        v_max_u32 v13, v13, v14
        v_cmp_eq_u32 vcc, -1, v13
        s_cbranch_vccnz P2_RT{h}
        P2_GO{h}:
        """)
        for k in (2 * h, 2 * h + 1):
            for c, a in ((1, A1), (0, A0)):
                p(mfma(vr(a, 16), ar(WO(k, c)), vr(OFR(k)), "0" if k == 0 else vr(a, 16)))
    p(st.mark())
    for q in range(4):
        p(f"ds_write_b128 v155, {vr(A1 + 4 * q)} offset:{49152 + q * 1024}", tok="yw")
    p.wait(["yw"])
    p("s_barrier")
    for q in range(4):
        p(f"ds_read_b128 {vr(88 + 4 * q)}, v156 offset:{49152 + q * 1024}")
    for r in range(0, 16, 2):
        p(f"v_pk_add_f32 {vr(A0 + r, 2)}, {vr(A0 + r, 2)}, {vr(88 + r, 2)}")
        p(f"v_pk_fma_f32 {vr(A0 + r, 2)}, {vr(A0 + r, 2)}, {vr(DA + r, 2)}, {vr(208 + r, 2)}")
    for r in range(8):
        p(f"v_cvt_pk_bf16_f32 v{16 + r}, v{A0 + 2 * r}, v{A0 + 1 + 2 * r}")
    for h in range(2):
        p(f"""
        v_permlane32_swap_b32 v{16 + 4 * h}, v{18 + 4 * h}
        v_permlane32_swap_b32 v{17 + 4 * h}, v{19 + 4 * h}
        buffer_store_dwordx4 {vr(16 + 4 * h)}, v153, s[56:59], 0 offen offset:{32 * h}
        """)
    p(st.mark())
    p(st.value("s35", "0x200000"))
    p("P2_DONE:")
    p(st.dump("s[4:7]", "s28", "s2"))
    p("P2_END:\ns_endpgm")
    for h in range(8):
        p(f"""
        P2_RT{h}:
        s_sub_u32 s35, s35, 1
        s_cbranch_scc1 P2_GV{h}
        """)
        p([ofl(k) for k in range(2 * h, 16)])
        p(f"s_branch P2_CK{h}\nP2_GV{h}:\ns_mov_b32 s35, 0\ns_branch P2_GO{h}")


def fused_setup(p):
    p(f"""
    s_and_b32 s36, s28, 1
    s_lshr_b32 s37, s28, 1
    s_lshl_b32 s38, s36, 15
    s_lshl_b32 s39, s32, 16
    s_lshl_b32 s60, s28, 14
    s_add_u32 s61, s60, 98304
    s_add_u32 s60, s60, s39
    s_add_u32 s60, s60, {WS_WOT}
    s_mul_i32 s39, s36, 0x8400
    s_add_u32 s39, s39, 98304
    v_add_u32 v157, s39, v1
    v_xor_b32 v158, 0x400, v157
    s_lshl_b32 s39, s31, 16
    s_add_u32 s39, s39, s38
    s_lshl_b32 s54, s37, 10
    s_add_u32 s54, s54, s39
    s_add_u32 s54, s54, {WS_OF}
    s_add_u32 s55, s54, 16384
    s_lshl_b32 s39, s31, 1
    s_add_u32 s39, s39, s37
    s_mul_i32 s39, s39, {32 * 896}
    s_lshl_b32 s38, s32, 7
    s_add_u32 s39, s39, s38
    s_lshl_b32 s38, s36, 6
    s_add_u32 s39, s39, s38
    v_mul_u32_u24 v152, 896, v14
    v_add_u32 v152, s39, v152
    v_lshrrev_b32 v154, 5, v13
    v_lshl_add_u32 v153, v154, 4, v152
    v_lshl_add_u32 v152, v154, 3, v152
    s_xor_b32 s38, s28, 1
    s_lshl_b32 s38, s38, 12
    v_add_u32 v155, s38, v1
    s_lshl_b32 s38, s28, 12
    v_add_u32 v156, s38, v1
    s_lshl_b32 s38, s30, 1
    s_add_u32 s38, s38, s37
    s_lshl_b32 s38, s38, 16
    s_lshl_b32 s39, s29, 12
    s_add_u32 s38, s38, s39
    s_lshl_b32 s39, s36, 10
    s_add_u32 s38, s38, s39
    s_add_u32 s51, s38, {WS_OF}
    s_mov_b32 s53, {f32(2.0 ** -60)}
    v_mov_b32 v154, {f32(2.0 ** 60)}
    s_mul_i32 s36, s28, 12288
    v_add_u32 v12, s36, v1
    """)
    for j in range(1, 4):
        p(f"""
        s_xor_b32 s36, s28, {j}
        s_mul_i32 s36, s36, 12288
        s_add_u32 s36, s36, {(j - 1) * 4096}
        v_add_u32 v{8 + j}, s36, v1
        """)
    p(srd(40, X_BYTES) + srd(56, X_BYTES))


def gen_p2(cfg):
    p = Prog()
    st = Stamps(cfg.get("stamps"), 1)
    SC = cfg.get("sc2", "")
    p(st.mark())
    p("""
    s_cmp_ge_u32 s2, 256
    s_cbranch_scc1 P2_END
    s_load_dwordx2 s[4:5], s[0:1], 72
    s_load_dwordx2 s[40:41], s[0:1], 0
    s_load_dwordx2 s[56:57], s[0:1], 56
    v_lshrrev_b32 v1, 6, v0
    v_and_b32 v13, 63, v0
    v_readfirstlane_b32 s28, v1
    v_lshlrev_b32 v1, 4, v13
    v_and_b32 v14, 31, v13
    v_lshlrev_b32 v5, 3, v14
    v_add_u32 v15, 0x100, v1
    v_cmp_gt_u32 vcc, 32, v13
    s_and_b32 s29, s2, 7
    s_lshl_b32 s29, s29, 1
    s_bfe_u32 s36, s2, 0x10003
    s_add_u32 s29, s29, s36
    s_lshr_b32 s30, s2, 4
    v_cndmask_b32 v5, v5, v15, vcc
    s_mov_b64 s[44:45], vcc
    """)
    for t in range(1, 4):
        p(f"v_add_u32 v{1 + t}, {4096 * t}, v1\nv_add_u32 v{5 + t}, {4096 * t}, v5")
    tile_map(p, "s31", "s32", "s33", "s36")
    p(srd(4, WS_SIZE))
    p(f"""
    s_lshl_b32 s36, s29, 17
    s_lshl_b32 s37, s30, 13
    s_add_u32 s36, s36, s37
    """)
    for j in range(4):
        p(f"s_xor_b32 s37, s28, {j}\ns_lshl_b32 s37, s37, 11\ns_add_u32 s{46 + j}, s36, s37")
    p(f"""
    s_lshl_b32 s36, s29, 18
    s_add_u32 s50, s36, {WS_KV}
    s_lshl_b32 s37, s28, 16
    s_add_u32 s36, s50, s37
    s_add_u32 s8, s4, s36
    s_addc_u32 s9, s5, 0
    """)
    p(srd(8, 65536))
    ql = lambda j: [f"buffer_load_dwordx4 {vr(Q(j, 0))}, v1, s[4:7], s{46 + j} offen offset:768",
                    f"buffer_load_dwordx4 {vr(Q(j, 1))}, v5, s[4:7], s{46 + j} offen"]
    p(ql(0))
    p([kv_load(0, 0, 0), kv_load(0, 1, 0)])
    p(ql(1))
    p([kv_load(0, 2, 0), kv_load(0, 3, 0)])
    p(ql(2) + ql(3))
    p(f"""
    s_cmp_lt_u32 s33, 28
    s_cselect_b32 s34, 14336, 0
    s_lshl_b32 s14, s34, 2
    s_cselect_b32 s42, {WS_SIZE}, 0
    s_mul_i32 s36, s32, {112 * 2048}
    s_mul_i32 s37, s28, {28 * 2048}
    s_add_u32 s36, s36, s37
    s_add_u32 s36, s36, {WS_WDT}
    s_and_b32 s38, s28, 1
    s_lshl_b32 s38, s38, 10
    s_add_u32 s36, s36, s38
    s_add_u32 s12, s4, s36
    s_addc_u32 s13, s5, 0
    s_xor_b32 s36, s36, 0x400
    s_add_u32 s16, s4, s36
    s_addc_u32 s17, s5, 0
    s_mul_i32 s36, s31, {112 * 2048}
    s_add_u32 s36, s36, s37
    s_add_u32 s36, s36, {WS_H}
    s_lshr_b32 s38, s28, 1
    s_lshl_b32 s38, s38, 10
    s_add_u32 s36, s36, s38
    s_add_u32 s20, s4, s36
    s_addc_u32 s21, s5, 0
    s_xor_b32 s36, s36, 0x400
    s_add_u32 s24, s4, s36
    s_addc_u32 s25, s5, 0
    s_mov_b32 s18, s14
    s_mov_b32 s22, s14
    s_mov_b32 s26, s14
    s_mov_b32 s15, 0x00020000
    s_mov_b32 s19, 0x00020000
    s_mov_b32 s23, 0x00020000
    s_mov_b32 s27, 0x00020000
    """)
    if not cfg.get("fuse3"):
        p("s_mov_b32 s40, s4\ns_mov_b32 s41, s5\ns_mov_b32 s43, 0x00020000")
    dl = lambda s: [d_load(s, part, s) for part in (0, 2, 1, 3)]
    p(dl(0))
    if cfg.get("pbar"):
        p("s_barrier")
    p(dl(1) + dl(2))
    p([kv_load(1, 0, 1), kv_load(1, 1, 1)] + dl(3) + [kv_load(1, 2, 1), kv_load(1, 3, 1)] + dl(4))
    p([kv_load(2, 0, 2), kv_load(2, 1, 2)] + dl(5) + [kv_load(2, 2, 2), kv_load(2, 3, 2)])
    p("s_add_u32 s8, s8, 12288\ns_addc_u32 s9, s9, 0\ns_sub_u32 s10, s10, 12288")
    p("s_cmp_lt_u32 s33, 28\ns_cselect_b32 s36, 12288, 0")
    for s in DSRD.values():
        p(f"s_add_u32 s{s}, s{s}, 12288\ns_addc_u32 s{s + 1}, s{s + 1}, 0\ns_sub_u32 s{s + 2}, s{s + 2}, s36")
    if cfg.get("fuse3"):
        fused_setup(p)
    for r in range(128):
        p(f"v_accvgpr_write_b32 a{r}, 0")
    for r in [S(1) + 14, S(1) + 15, P + 4, P + 5, P + 6] + [KV(3, 3) + i for i in range(4)]:
        p(f"v_mov_b32 v{r}, 0")
    p("s_mov_b32 s35, 4")
    p(st.mark())
    zq = lambda j: [f"v_cndmask_b32 v{Q(j, 1) + i}, 0, v{Q(j, 1) + i}, s[44:45]" for i in (2, 3)]
    p(zq(0))
    p(mfma(vr(S(0), 16), vr(KV(0, 0)), vr(Q(0, 0)), "0"))
    p(mfma(vr(S(0), 16), vr(KV(0, 1)), vr(Q(0, 1)), vr(S(0), 16)))
    p(zq(1) + zq(2) + zq(3))
    p(st.mark())
    p(st.mark(True))
    p("P2_LOOP:")
    salu = []
    for s in DSRD.values():
        salu.append([f"s_add_u32 s{s}, s{s}, 14336", f"s_addc_u32 s{s + 1}, s{s + 1}, 0"])
        salu.append([f"s_sub_u32 s{s + 2}, s{s + 2}, s34"])
    for j in range(16):
        s0, s1 = S(j), S(j + 1)
        e = lambda i: f"v_exp_f32 v{s0 + i}, v{s0 + i}"
        c = lambda i: f"v_cvt_pk_bf16_f32 v{P + i}, v{s0 + 2 * i}, v{s0 + 2 * i + 1}"
        c7 = f"v_cvt_pk_bf16_f32 v{P + 7}, v{s1 + 14}, v{s1 + 15}"
        grp = [[e(0), c7, e(1), e(2)], [c(0), e(3), e(4), c(1)], [e(5), e(6), c(2), e(7)],
               [e(8), c(3), e(9), e(10)], [c(4), e(11), e(12), c(5)], [e(13), e(14), c(6), e(15)]]
        tt, qb = j >> 2, j & 3
        pt, pq = ((j - 1) >> 2) & 3, (j - 1) & 3
        nt, nq = ((j + 1) >> 2) & 3, (j + 1) & 3
        mm = [mfma(O(pq), vr(KV(pt, 3)), vr(P + 4), O(pq)),
              mfma(vr(s1, 16), vr(KV(nt, 0)), vr(Q(nq, 0)), "0"),
              mfma(vr(s1, 16), vr(KV(nt, 1)), vr(Q(nq, 1)), vr(s1, 16)),
              mfma(O(qb), vr(KV(tt, 2)), vr(P), O(qb)), None, None]
        after = [[] for _ in range(6)]
        need = []
        if qb == 3:
            need += [vr(KV(nt, 0)), vr(KV(nt, 1))]
        if qb == 0:
            need += [vr(KV(tt, 2)), vr(KV(tt, 3))]
        if j < 14:
            k, t = j >> 1, j & 1
            mm[4] = mfma(D(2 * t), ar(DR(k, 0)), ar(DR(k, 2 + t)), D(2 * t))
            mm[5] = mfma(D(2 * t + 1), ar(DR(k, 1)), ar(DR(k, 2 + t)), D(2 * t + 1))
            if t == 0:
                need += [ar(DR(k, i)) for i in range(4)]
            after[2].append(d_load((k - 1) % 7, t, k))
            after[3].append(d_load((k - 1) % 7, 2 + t, k))
        ex = cfg.get("exp", "")
        if "m16" in ex:
            o4 = lambda q, i: ar(16 * q + 4 * i)
            d4 = lambda q, i: ar(64 + 16 * q + 4 * i)
            mm[0] = [mf16(o4(pq, 2), vr(KV(pt, 2)), vr(P + 4), o4(pq, 2)), mf16(o4(pq, 3), vr(KV(pt, 3)), vr(P + 4), o4(pq, 3))]
            mm[1] = [mf16(vr(s1), vr(KV(nt, 0)), vr(Q(nq, 0)), "0"), mf16(vr(s1 + 4), vr(KV(nt, 1)), vr(Q(nq, 0)), "0")]
            mm[2] = [mf16(vr(s1 + 8), vr(KV(nt, 0)), vr(Q(nq, 1)), "0"), mf16(vr(s1 + 12), vr(KV(nt, 1)), vr(Q(nq, 1)), "0")]
            mm[3] = [mf16(o4(qb, 0), vr(KV(tt, 2)), vr(P), o4(qb, 0)), mf16(o4(qb, 1), vr(KV(tt, 3)), vr(P), o4(qb, 1))]
            if j < 14:
                kk = 2 * (k & 1)
                mm[4] = [mf16(d4(2 * t, kk), ar(DR(k, 0)), ar(DR(k, 2 + t)), d4(2 * t, kk)), mf16(d4(2 * t, kk + 1), ar(DR(k, 1)), ar(DR(k, 2 + t)), d4(2 * t, kk + 1))]
                mm[5] = [mf16(d4(2 * t + 1, kk), ar(DR(k, 0)), ar(DR(k, 3 - t)), d4(2 * t + 1, kk)), mf16(d4(2 * t + 1, kk + 1), ar(DR(k, 1)), ar(DR(k, 3 - t)), d4(2 * t + 1, kk + 1))]
            if "split" in ex:
                for g in range(6):
                    if mm[g] is not None and g < 5:
                        grp[g + 1] = grp[g + 1][:2] + [mm[g][1]] + grp[g + 1][2:]
                        mm[g] = mm[g][0]
        if "nod" in ex:
            mm[4] = mm[5] = None
            after[2], after[3] = [], []
            need = [x for x in need if x[0] == "v"]
        if "noexp" in ex:
            grp = [[x for x in g if not (isinstance(x, str) and x.startswith("v_exp"))] for g in grp]
        if "nomf" in ex:
            mm = [None] * 6
        if need:
            after[0].append(W(need))
        after[1].append(kv_load((tt + 3) & 3, qb, tt))
        if j == 13:
            after[4] += salu[0]; after[5] += salu[4]
        if j == 14:
            after[0] += salu[1]; after[2] += salu[2]; after[3] += salu[6]; after[4] += salu[3] + salu[5] + salu[7]
        if cfg.get("fuse3"):
            if j == 0:
                after[1].insert(0, "s_mov_b32 m0, s61")
            if j in (1, 3, 5, 7):
                after[4].append(Ins(f"buffer_load_dwordx4 v1, s[4:7], s60 offen offset:{(j >> 1) * 1024} lds", tok="wo"))
            if j == 14:
                after[5] += ["s_add_u32 s61, s61, 4096", "s_add_u32 s60, s60, 4096"]
        if j == 15:
            after[2] += ["s_add_u32 s8, s8, 16384", "s_addc_u32 s9, s9, 0"]
            after[3] += ["s_sub_u32 s10, s10, 16384", "s_sub_u32 s35, s35, 1"]
            after[4] += ["s_cmp_lg_u32 s35, 0"]
        for g in range(6):
            p(grp[g])
            if mm[g] is not None:
                p(mm[g])
            p(after[g])
    p("s_cbranch_scc1 P2_LOOP")
    p(st.mark())
    p(st.mark(True))
    if cfg.get("fuse3"):
        fused_tail(p, st, cfg)
    else:
        plain_tail(p, st, SC)
    OA = 160
    L0, L1 = (14, 15) if cfg.get("fuse3") else (9, 10)
    s0 = S(0)
    kq = [f"buffer_load_dwordx4 {vr(KV(0, 0))}, v1, s[4:7], s36 offen offset:768",
          f"buffer_load_dwordx4 {vr(KV(0, 1))}, v5, s[4:7], s36 offen"]
    qk = [mfma(vr(s0, 16), vr(KV(0, 0)), vr(Q(0, 0)), "0"), mfma(vr(s0, 16), vr(KV(0, 1)), vr(Q(0, 1)), vr(s0, 16))]
    p(f"P2_FB:\ns_mov_b32 s36, s50\ns_mov_b32 s35, 64\nv_mov_b32 v{L0}, 0xff800000\nP2_FB1:")
    p(kq + qk)
    for r in range(0, 16, 2):
        p(f"v_max3_f32 v{L0}, v{L0}, v{s0 + r}, v{s0 + r + 1}")
    p(f"""
    s_add_u32 s36, s36, 4096
    s_sub_u32 s35, s35, 1
    s_cmp_lg_u32 s35, 0
    s_cbranch_scc1 P2_FB1
    v_mov_b32 v{L1}, v{L0}
    v_permlane32_swap_b32 v{L0}, v{L1}
    v_max_f32 v{L0}, v{L0}, v{L1}
    s_mov_b32 s36, s50
    s_mov_b32 s35, 64
    """)
    for r in range(16):
        p(f"v_mov_b32 v{OA + r}, 0")
    p("P2_FB2:")
    p(kq)
    p(f"buffer_load_dwordx4 {vr(KV(0, 2))}, v1, s[4:7], s36 offen offset:2048")
    p(f"buffer_load_dwordx4 {vr(KV(0, 3))}, v1, s[4:7], s36 offen offset:3072")
    p(qk)
    for r in range(16):
        p(f"v_sub_f32 v{s0 + r}, v{s0 + r}, v{L0}")
    for r in range(16):
        p(f"v_exp_f32 v{s0 + r}, v{s0 + r}")
    for r in range(8):
        p(f"v_cvt_pk_bf16_f32 v{P + r}, v{s0 + 2 * r}, v{s0 + 2 * r + 1}")
    p(mfma(vr(OA, 16), vr(KV(0, 2)), vr(P), vr(OA, 16)))
    p(mfma(vr(OA, 16), vr(KV(0, 3)), vr(P + 4), vr(OA, 16)))
    p(f"""
    s_add_u32 s36, s36, 4096
    s_sub_u32 s35, s35, 1
    s_cmp_lg_u32 s35, 0
    s_cbranch_scc1 P2_FB2
    v_mov_b32 v{L0}, v{OA + 12}
    v_mov_b32 v{L1}, v{OA + 12}
    v_permlane32_swap_b32 v{L0}, v{L1}
    s_branch P2_NORM
    """)
    return dict(name="p2_kernel", code=p.finalize(), grid=256, lds=163840 if cfg.get("fuse3") else 98304, vgpr=256, agpr=256)
```
